```python
import torch

def _softmax(x, axis=-1):
    return torch.softmax(x, dim=axis)

def _gelu(x):
    return torch.nn.functional.gelu(x, approximate='tanh')

def _silu(x):
    return torch.nn.functional.silu(x)

def _sigmoid(x):
    return torch.sigmoid(x)

def _layernorm(x, axis=-1, eps=1e-05):
    m = x.mean(dim=axis, keepdim=True)
    v = x.var(dim=axis, keepdim=True, unbiased=False)
    return (x - m) / torch.sqrt(v + eps)

def _scatter_add(tgt, idx, src, axis=0):
    return tgt.clone().index_add_(axis, idx, src)

def _segment_sum(src, seg, n):
    out = torch.zeros((n,) + src.shape[1:], dtype=src.dtype)
    return out.index_add_(0, seg, src)

def _pad(x, pw):
    flat = tuple((v for pair in reversed(pw) for v in pair))
    return torch.nn.functional.pad(x, flat)
kernel_name = 'adaLN_cond__ssm_conv_s4d__mixer_s_mlp__prompt'

def setup_inputs():

    _w = lambda a: (lambda t: t.to(torch.bfloat16) if t.is_floating_point() else t)(torch.as_tensor(a))

    def _A_setup():
        Bsz, L, D, N = (1, 2048, 576, 128)
        return {'u': _w((lambda *s: torch.randn(*s, dtype=torch.bfloat16) * 0.05)(Bsz, L, D)), 'log_A_real': _w((lambda *s: torch.randn(*s, dtype=torch.bfloat16) * 3.2)(D, N) * 0.5), 'A_imag': _w((lambda *s: torch.randn(*s, dtype=torch.bfloat16) * 0.1)(D, N) * 3.14), 'C_real': _w((lambda *s: torch.randn(*s, dtype=torch.bfloat16) * 0.4)(D, N) / N ** 0.5), 'C_imag': _w((lambda *s: torch.randn(*s, dtype=torch.bfloat16) * 0.4)(D, N) / N ** 0.5), 'log_dt': _w((lambda *s: torch.randn(*s, dtype=torch.bfloat16) * 0.1)(D) * 0.5 - 4.0), 'D_skip': _w((lambda *s: torch.randn(*s, dtype=torch.bfloat16) * 0.1)(D))}
    _A_in = _A_setup()

    def _B_setup():
        B, S, D, F = (1, 2048, 576, 4608)
        return {'x': _w((lambda *s: torch.randn(*s, dtype=torch.bfloat16) * 0.05)(B, S, D)), 'w1': _w((lambda *s: torch.randn(*s, dtype=torch.bfloat16) * 3.2)(D, D) * D ** (-0.5)), 'w2': _w((lambda *s: torch.randn(*s, dtype=torch.bfloat16) * 3.2)(D, D) * D ** (-0.5)), 'w3': _w((lambda *s: torch.randn(*s, dtype=torch.bfloat16) * 3.2)(D, F) * D ** (-0.5)), 'w4': _w((lambda *s: torch.randn(*s, dtype=torch.bfloat16) * 3.2)(F, D) * F ** (-0.5))}
    _B_in = _B_setup()
    return {'A_u': _A_in['u'], 'A_log_A_real': _A_in['log_A_real'], 'A_A_imag': _A_in['A_imag'], 'A_C_real': _A_in['C_real'], 'A_C_imag': _A_in['C_imag'], 'A_log_dt': _A_in['log_dt'], 'A_D_skip': _A_in['D_skip'], 'B_x': _B_in['x'], 'B_w1': _B_in['w1'], 'B_w2': _B_in['w2'], 'B_w3': _B_in['w3'], 'B_w4': _B_in['w4'], 'c': _w((lambda *s: torch.randn(*s, dtype=torch.bfloat16) * 0.2)(1, 576) * 8.0), 'w_mod': _w((lambda *s: torch.randn(*s, dtype=torch.bfloat16) * 0.2)(576, 6 * 576) * 576 ** (-0.5) * 8.0)}

def reference(A_u, A_log_A_real, A_A_imag, A_C_real, A_C_imag, A_log_dt, A_D_skip, B_x, B_w1, B_w2, B_w3, B_w4, c, w_mod):

    def _A_ref(u, log_A_real, A_imag, C_real, C_imag, log_dt, D_skip):
        L = u.shape[1]
        dt = torch.exp(log_dt)
        A = -torch.exp(log_A_real) + 1j * A_imag
        C = (C_real + 1j * C_imag) * dt[:, None]
        pos = (lambda x, dt: x.to(dt))(torch.arange(L), log_dt.dtype)
        P = torch.exp((A * dt[:, None])[:, :, None] * pos[None, None, :])
        K = 2.0 * torch.einsum('dn,dnl->dl', C, P).real
        L2 = 2 * L
        u_t = (lambda x, *d: x.permute(*d))(u, 0, 2, 1)
        Kf = (lambda x, *a, **k: torch.fft.rfft(x.float(), *a, **k))(K, L2)
        Uf = (lambda x, *a, **k: torch.fft.rfft(x.float(), *a, **k))(u_t, L2)
        y = (lambda x, *a, **k: torch.fft.irfft(x, *a, **k).to(torch.bfloat16))(Uf * Kf[None, :, :], L2)[:, :, :L]
        y = (lambda x, *d: x.permute(*d))(y, 0, 2, 1)
        return y + u * D_skip[None, None, :]

    def _B_ref(x, w1, w2, w3, w4):
        B, S, D = x.shape
        h = _gelu(_layernorm(x, axis=-1) @ w1)
        c = D // 4
        g0 = _pad(h[:, :, 0 * c:1 * c], ((0, 0), (1, 0), (0, 0)))[:, :S, :]
        g1 = _pad(h[:, :, 1 * c:2 * c], ((0, 0), (0, 1), (0, 0)))[:, 1:, :]
        g2 = _pad(h[:, :, 2 * c:3 * c], ((0, 0), (2, 0), (0, 0)))[:, :S, :]
        g3 = _pad(h[:, :, 3 * c:], ((0, 0), (0, 2), (0, 0)))[:, 2:, :]
        hs = torch.concatenate([g0, g1, g2, g3], axis=-1) @ w2
        x1 = x + hs
        h2 = _gelu(_layernorm(x1, axis=-1) @ w3) @ w4
        return x1 + h2
    x = A_u
    mod = (_silu(c) @ w_mod).reshape(c.shape[0], 6, 1, -1)
    sa, ca, ga, sb, cb, gb = (mod[:, 0].clone(), mod[:, 1].clone(), mod[:, 2].clone(), mod[:, 3].clone(), mod[:, 4].clone(), mod[:, 5].clone())
    h = _layernorm(x, axis=-1) * (1 + ca) + sa
    x = x + ga * _A_ref(h, A_log_A_real, A_A_imag, A_C_real, A_C_imag, A_log_dt, A_D_skip)
    h = _layernorm(x, axis=-1) * (1 + cb) + sb
    x = x + gb * _B_ref(h, B_w1, B_w2, B_w3, B_w4)
    return x
```

```python
from dsl import *
L, D, N, F = 2048, 576, 128, 4608
ACT = L * D * 2
WS_MODP = 0x000000
WS_MODF = 0x010000
WS_KSC  = 0x014000
WS_CS1  = 0x015000
WS_CS3  = 0x018000
WS_UT   = 0x040000
UT_PITCH = 1344
WS_NT   = 0x100000
WS_XT   = WS_NT + ACT
WS_X1T  = WS_XT + ACT
WS_X1F  = WS_X1T + ACT
WS_HBF  = WS_X1F + ACT
WS_TF   = WS_HBF + ACT
WS_XBF  = WS_TF + ACT
WS_ST4  = WS_XBF + ACT
WS_WT   = 0x1100000
WBLK = 36 * 18 * 1024
WS_PART = 0x1D00000
WS_END  = WS_PART + 8 * ACT
WS_DBG  = 0x3000000
assert WS_ST4 + 2048 * 96 <= WS_WT and WS_WT + 18 * WBLK <= WS_PART
ARG = dict(u=0, lar=8, aim=16, cre=24, cim=32, ldt=40, dsk=48, bx=56, w1=64, w2=72, w3=80, w4=88, c=96, wmod=104,
           out=112, dbg=120, ws=128)
SIZE = dict(u=ACT, lar=D*N*2, aim=D*N*2, cre=D*N*2, cim=D*N*2, ldt=D*2, dsk=D*2, w1=D*D*2, w2=D*D*2, w3=D*F*2,
            w4=D*F*2, c=D*2, wmod=D*6*D*2, out=ACT, ws=WS_DBG + 0x100000)
LOG2E = 1.4426950408889634
OOB = 0x7ffffff0

def load_srds(a, specs):
    for name, s in specs:
        a(f"s_load_dwordx2 s[{s}:{s+1}], s[0:1], {ARG[name]}")
    for name, s in specs:
        a(f"s_mov_b32 s{s+2}, {SIZE[name]}\ns_mov_b32 s{s+3}, 0x20000")

def bf16_round(a, dst, src):
    a(f"v_cvt_pk_bf16_f32 {dst}, {src}, {src}\nv_and_b32 {dst}, 0xffff0000, {dst}")

def row_allreduce_add(a, v):
    for k in (8, 4, 2, 1):
        a(f"v_add_f32_dpp {v}, {v}, {v} row_ror:{k} row_mask:0xf bank_mask:0xf bound_ctrl:1")

def group_allreduce(a, v, t, op="v_add_f32"):
    a(f"v_mov_b32 {t}, {v}\nv_permlane16_swap_b32 {v}, {t}\n{op} {v}, {v}, {t}")
    a(f"v_mov_b32 {t}, {v}\nv_permlane32_swap_b32 {v}, {t}\n{op} {v}, {v}, {t}")

GELU_K = -2.0 * 0.7978845608028654 * LOG2E
GELU_C = 0.044715

def tile_of(n, w, a):
    return n * w + ((a + 1) % n if w & 1 else a)

def row_stats(a, s1, s2, t):
    a(f"v_mul_f32 {s1}, {fbits(1/576)}, {s1}\nv_mul_f32 {s2}, {fbits(1/576)}, {s2}\nv_fma_f32 {s2}, -{s1}, {s1}, {s2}\nv_max_f32 {s2}, 0, {s2}")
    bf16_round(a, s1, s1)
    bf16_round(a, s2, s2)
    a(f"v_add_f32 {s2}, {fbits(1e-5)}, {s2}")
    bf16_round(a, s2, s2)
    a(f"v_sqrt_f32 {s2}, {s2}")
    bf16_round(a, s2, s2)

def gelu_consts(a, m, sd, a0, a1):
    a(f"""v_rcp_f32 {a0}, {sd}
    v_sub_f32 {m}, 0, {m}
    v_mul_f32 {a1}, {a0}, {a0}
    v_mul_f32 {a0}, {fbits(GELU_K)}, {a0}
    v_mul_f32 {a1}, {fbits(GELU_C)}, {a1}
    v_mul_f32 {a1}, {a1}, {a0}""")

def gelu_tile(acc, cs, nm, sd, a0, a1, t, out):
    r = range(4)
    o = [f"v_fmac_f32 v{acc+i}, v{nm}, v{cs+i}" for i in r]
    o += [f"v_mul_f32 v{t+i}, v{acc+i}, v{acc+i}" for i in r]
    o += [f"v_fma_f32 v{t+i}, v{t+i}, v{a1}, v{a0}" for i in r]
    o += [f"v_mul_f32 v{t+i}, v{t+i}, v{acc+i}" for i in r]
    o += [f"v_exp_f32 v{t+i}, v{t+i}" for i in r]
    o += [f"v_fma_f32 v{t+i}, v{t+i}, v{sd}, v{sd}" for i in r]
    o += [f"v_rcp_f32 v{t+i}, v{t+i}" for i in r]
    o += [f"v_mul_f32 v{t+i}, v{t+i}, v{acc+i}" for i in r]
    o += [f"v_cvt_pk_bf16_f32 v{out+i}, v{t+2*i}, v{t+2*i+1}" for i in range(2)]
    return o
```

```python
import re

TRANS = ("v_exp_f32", "v_log_f32", "v_rcp_f32", "v_rsq_f32", "v_sqrt_f32", "v_sin_f32", "v_cos_f32",
         "v_rcp_iflag_f32", "v_exp_f16", "v_rcp_f16")
RMW = ("v_fmac_", "v_dot2c_", "v_fma_mixlo", "v_fma_mixhi", "v_writelane", "v_pk_fmac")
_REG = re.compile(r"^(-|\|)*([vas])(\d+|\[(\d+):(\d+)\])\|?$")

def regs_of(tok):
    tok = tok.strip()
    tok = re.sub(r"^abs\((.*)\)$", r"\1", tok.lstrip("-"))
    if tok in ("vcc", "exec"):
        return {tok}
    if tok in ("vcc_lo", "vcc_hi"):
        return {"vcc"}
    if tok in ("exec_lo", "exec_hi"):
        return {"exec"}
    if tok == "m0":
        return {"m0"}
    m = _REG.match(tok)
    if not m:
        return set()
    k = m.group(2)
    if m.group(4) is not None:
        return {f"{k}{i}" for i in range(int(m.group(4)), int(m.group(5)) + 1)}
    return {f"{k}{m.group(3)}"}

class Ins:
    def __init__(self, text):
        self.text = text
        body = text.split(";")[0].strip()
        self.label = body[:-1] if body.endswith(":") else None
        self.op = "" if self.label or not body else body.split()[0]
        rest = body[len(self.op):].strip() if self.op else ""
        toks = [t.strip() for t in rest.split(",")] if rest else []
        mods = ""
        if toks:
            parts = toks[-1].split(None, 1)
            toks[-1] = parts[0]
            mods = parts[1] if len(parts) > 1 else ""
        self.toks, self.mods = toks, mods
        op = self.op
        self.dst, self.src = set(), set()
        self.kind = "other"
        R = [regs_of(t) for t in toks]
        U = lambda l: set().union(*l) if l else set()
        self.mfma = op.startswith("v_mfma")
        if self.mfma:
            self.kind = "mfma"
            self.dst = R[0]; self.A = R[1]; self.B = R[2]; self.C = R[3]
            self.src = R[1] | R[2] | R[3]
            self.passes = 8 if "32x32" in op else 4
        elif op.startswith("v_"):
            self.kind = "valu"
            nd = 1
            if "_co_" in op or op.startswith("v_mad_u64") or op.startswith("v_div_scale"):
                nd = 2
            if "swap" in op:
                self.dst = R[0] | R[1]; self.src = R[0] | R[1]
            else:
                self.dst = U(R[:nd]); self.src = U(R[nd:])
            if op.startswith(RMW) or ("dpp" in op and "bound_ctrl" not in mods) or "UNUSED_PRESERVE" in mods:
                self.src |= R[0]
            if op.startswith("v_cndmask") and len(toks) == 3:
                self.src |= {"vcc"}
        elif op.startswith(("buffer_", "global_")):
            self.kind = "vmem"
            lds = " lds" in " " + mods
            self.lds_dma = lds or "load_lds" in op
            if op in ("buffer_wbl2", "buffer_inv"):
                pass
            elif "load" in op and not self.lds_dma:
                self.dst = R[0]; self.src = U(R[1:])
                if "d16" in op: self.src |= R[0]
            elif "atomic" in op and "sc0" in mods and op.startswith("global_"):
                self.dst = R[0]; self.src = U(R[1:])
            elif "atomic" in op and "sc0" in mods:
                self.dst = R[0]; self.src = U(R)
            else:
                self.src = U(R)
            if self.lds_dma: self.src |= {"m0"}
            self.wide_store = ("store" in op) and ("x3" in op or "x4" in op)
            if self.wide_store:
                self.data = R[1] if op.startswith("global_") else R[0]
        elif op.startswith("ds_"):
            self.kind = "ds"
            if op.startswith(("ds_read", "ds_bpermute", "ds_permute", "ds_swizzle")) or "_rtn" in op:
                self.dst = R[0]; self.src = U(R[1:])
                if "d16" in op: self.src |= R[0]
            else:
                self.src = U(R)
        elif op.startswith(("s_load", "s_buffer_load", "s_memtime", "s_memrealtime", "s_atomic")):
            self.kind = "smem"
            self.dst = R[0]; self.src = U(R[1:])
        elif op.startswith("s_"):
            self.kind = "salu"
            if op.startswith(("s_cmp", "s_cbranch", "s_branch", "s_waitcnt", "s_nop", "s_barrier", "s_endpgm",
                              "s_setprio", "s_sleep", "s_bitcmp")):
                self.src = U(R)
            else:
                self.dst = R[0] if R else set(); self.src = U(R[1:])
                if "saveexec" in op: self.dst |= {"exec"}; self.src |= {"exec"}
                if op.startswith(("s_addk", "s_mulk", "s_cmov")): self.src |= R[0]
        self.trans = op.split("_e32")[0].split("_e64")[0] in TRANS
        self.dpp = "dpp" in op or "row_" in mods or "quad_perm" in mods
        self.perml = op.startswith("v_permlane")
        self.rdlane = op.startswith(("v_readlane", "v_readfirstlane"))
        self.bitmove = op.startswith("v_fma_mixhi") or ("dst_sel" in mods and "dst_sel:DWORD" not in mods)
        self.states = 1
        if op == "s_nop":
            self.states = int(toks[0], 0) + 1

def vec(s): return {r for r in s if r[0] in "va" and r != "vcc"}
def sca(s): return {r for r in s if r[0] == "s" or r in ("vcc",)}

def need_states(p, c):
    n = 0
    if p.kind == "valu":
        w = vec(p.dst); ws = sca(p.dst)
        if c.mfma and w & c.src: n = max(n, 2)
        if c.kind == "valu":
            if p.trans and not c.trans and w & c.src: n = max(n, 1)
            if p.bitmove and w & (c.src | c.dst): n = max(n, 1)
            if c.rdlane and w & c.src: n = max(n, 1)
            if (c.dpp or c.perml) and w & c.src: n = max(n, 2)
            if ws & c.src: n = max(n, 4 if c.op.startswith(("v_readlane", "v_writelane")) else 2)
        if p.op.startswith("v_dot") and c.kind in ("valu", "mfma", "vmem", "ds") and w & (c.src | c.dst):
            same_acc = c.op == p.op and not (w & set().union(*[regs_of(t) for t in c.toks[1:3]]))
            if not same_acc: n = max(n, 3)
        if c.kind == "vmem" and ws & c.src: n = max(n, 5)
        if c.kind in ("salu", "smem") and ws & c.src: n = max(n, 1)
    if p.mfma:
        big = p.passes == 8
        if c.mfma:
            if p.dst & (c.A | c.B): n = max(n, 12 if big else 8)
            if p.dst & c.C and not (p.dst == c.C and p.passes == c.passes): n = max(n, 10 if big else 6)
            if p.dst & c.dst and not (p.dst & c.C): n = max(n, 10 if big else 6)
        elif c.kind in ("valu", "vmem", "ds"):
            if p.dst & (c.src | c.dst): n = max(n, 12 if big else 8)
            if c.kind == "valu" and p.C & c.dst: n = max(n, 7 if big else 3)
    if p.kind == "vmem" and getattr(p, "wide_store", False):
        if p.data & c.dst: n = max(n, 2 if c.kind == "valu" else 1)
    if p.kind == "salu" and "m0" in p.dst and "m0" in c.src and c.kind in ("vmem", "valu", "ds"):
        n = max(n, 1)
    return n

class State:
    def __init__(self):
        self.vm = []
        self.lg = []
        self.hists = [[]]
    def copy(self):
        s = State(); s.vm = list(self.vm); s.lg = list(self.lg); s.hists = [list(h) for h in self.hists]; return s
    def push(self, ins):
        for h in self.hists:
            h.append(ins)
            if len(h) > 48: del h[:-24]
        if len(self.hists) > 1 and all(h[-22:] == self.hists[0][-22:] for h in self.hists):
            self.hists = self.hists[:1]

def finalize(lines, stats=None):
    out = []
    st = State()
    saved = {}
    entry = {}
    dead = False
    nnop = nwait = 0
    def apply_wait(ins):
        t = ins.text
        m = re.search(r"vmcnt\((\d+)\)", t)
        if m:
            n = int(m.group(1)); st.vm = st.vm[max(0, len(st.vm) - n):] if n else []
        m = re.search(r"lgkmcnt\((\d+)\)", t)
        if m:
            n = int(m.group(1))
            if n == 0: st.lg = []
            elif not any(x[1] for x in st.lg): st.lg = st.lg[max(0, len(st.lg) - n):]
    for text in lines:
        s = text.strip()
        if not s or s.startswith((";", ".")) and not s.endswith(":"):
            out.append(text); continue
        ins = Ins(s)
        if ins.label is not None:
            srcs = saved.pop(ins.label, [])
            if not dead: srcs = srcs + [st]
            if not srcs: st = State()
            else:
                base = max(srcs, key=lambda x: (len(x.vm), len(x.lg))).copy()
                for o in srcs:
                    pend = lambda x: (set().union(*x.vm) if x.vm else set()) | (set().union(*[y[0] for y in x.lg]) if x.lg else set())
                    if (o.vm != base.vm or o.lg != base.lg) and (pend(o) or pend(base)):
                        raise RuntimeError(f"pending loads differ at label {ins.label}")
                base.hists = [list(h) for o in srcs for h in o.hists]
                st = base
            entry[ins.label] = st.copy()
            dead = False
            out.append(text); continue
        if dead:
            st = State(); dead = False
        touch = ins.src | ins.dst
        if ins.op == "s_waitcnt":
            apply_wait(ins)
        else:
            nv = None
            for i, d in enumerate(st.vm):
                if d & touch: nv = len(st.vm) - 1 - i
            nl = None
            for i, (d, sm) in enumerate(st.lg):
                if d & touch: nl = len(st.lg) - 1 - i
            if nl is not None and any(x[1] for x in st.lg): nl = 0
            if nv is not None or nl is not None:
                w = "s_waitcnt" + (f" vmcnt({min(nv,63)})" if nv is not None else "") + (f" lgkmcnt({min(nl,15)})" if nl is not None else "")
                wi = Ins(w); apply_wait(wi); out.append("    " + w); st.push(wi); nwait += 1
        need = 0
        for h in st.hists:
            dist = 0
            for p in reversed(h):
                n = need_states(p, ins)
                if n > dist: need = max(need, n - dist)
                dist += p.states
                if dist >= 20: break
        while need > 0:
            k = min(need, 16)
            ni = Ins(f"s_nop {k-1}"); out.append(f"    s_nop {k-1}"); st.push(ni); need -= k; nnop += 1
        out.append(text)
        st.push(ins)
        if ins.kind == "vmem":
            st.vm.append(set(ins.dst))
        elif ins.kind == "ds":
            st.lg.append((set(ins.dst), False))
        elif ins.kind == "smem":
            st.lg.append((set(ins.dst), True))
        if ins.op.startswith(("s_cbranch", "s_branch")):
            tgt = ins.toks[0]
            if tgt in entry:
                e = entry[tgt]
                if (e.vm != st.vm or e.lg != st.lg): raise RuntimeError(f"loop state differs at {tgt}")
            else:
                saved.setdefault(tgt, []).append(st.copy())
        if ins.op in ("s_branch", "s_endpgm"):
            dead = True
    if stats is not None:
        stats.update(nnop=nnop, nwait=nwait)
    return out

class Asm:
    def __init__(self):
        self.lines = []
        self.launches = []
        self.descs = []
        self.nlab = 0
    def __call__(self, s):
        for l in s.split("\n"):
            l = l.strip()
            if not l: continue
            self.lines.append(l if l.endswith(":") else "    " + l)
    def label(self, base="L"):
        self.nlab += 1
        return f"{base}_{self.nlab}"
    def kernel(self, name, grid, block, lds, vgpr, agpr=0, sgpr=96):
        self.launches.append(f"; @launch kernel={name} grid=({grid},1,1) block=({block},1,1) lds={lds}")
        self.lines += [f".globl {name}", ".p2align 8", f".type {name},@function", f"{name}:"]
        acc = (vgpr + 3) // 4 * 4
        nfv = acc + agpr if agpr else vgpr
        assert nfv <= 512 and acc <= 256
        self.descs.append(f""".p2align 6
.amdhsa_kernel {name}
  .amdhsa_next_free_vgpr {nfv}
  .amdhsa_next_free_sgpr {sgpr}
  .amdhsa_accum_offset {acc}
  .amdhsa_group_segment_fixed_size 0
  .amdhsa_kernarg_size 136
  .amdhsa_user_sgpr_count 2
  .amdhsa_user_sgpr_kernarg_segment_ptr 1
  .amdhsa_system_sgpr_workgroup_id_x 1
  .amdhsa_float_denorm_mode_32 3
  .amdhsa_float_denorm_mode_16_64 3
  .amdhsa_ieee_mode 0
.end_amdhsa_kernel""")
    def text(self, header="", auto=True):
        out = []
        if header:
            out.append(header.rstrip("\n"))
        out += self.launches
        out.append('.amdgcn_target "amdgcn-amd-amdhsa--gfx950"')
        out.append(".text")
        self.stats = {}
        out += finalize(self.lines, self.stats) if auto else self.lines
        out.append('.section .rodata,"a"')
        out += self.descs
        return "\n".join(out) + "\n"

def vr(b, n=1): return f"v{b}" if n == 1 else f"v[{b}:{b+n-1}]"
def ar(b, n=1): return f"a{b}" if n == 1 else f"a[{b}:{b+n-1}]"
def sr(b, n=1): return f"s{b}" if n == 1 else f"s[{b}:{b+n-1}]"
def fbits(x):
    import struct
    return "0x%08x" % struct.unpack("<I", struct.pack("<f", x))[0]

def interleave(main, fillers, start=0, end=None):
    end = len(main) if end is None else end
    n = end - start
    gaps = [[] for _ in main]
    for i, f in enumerate(fillers):
        gaps[start + min(n - 1, i * n // max(1, len(fillers)))].append(f)
    out = []
    for m, g in zip(main, gaps):
        out.append(m); out += g
    return out
```

```python
from common import *
import math
N_KGEN, N_LN, N_MOD = 288, 128, 216
LDS0 = 54272

def cmul(a, d, z, w):
    t = d if d not in (z, w) else 60
    a(f"v_pk_mul_f32 {vr(t,2)}, {vr(z,2)}, {vr(w,2)} op_sel:[0,0] op_sel_hi:[0,1]")
    a(f"v_pk_fma_f32 {vr(d,2)}, {vr(z,2)}, {vr(w,2)}, {vr(t,2)} op_sel:[1,1,0] op_sel_hi:[1,0,1] neg_lo:[1,0,0]")

def kgen(a):
    load_srds(a, [("lar", 8), ("aim", 12), ("cre", 16), ("cim", 20), ("ldt", 24), ("ws", 28)])
    a("""
    v_lshrrev_b32 v1, 6, v0
    v_and_b32 v2, 63, v0
    v_readfirstlane_b32 s3, v1
    s_lshr_b32 s4, s3, 1
    s_and_b32 s5, s3, 1
    s_lshl_b32 s6, s2, 1
    s_add_u32 s6, s6, s4
    s_lshl_b32 s7, s6, 8
    s_lshl_b32 s32, s5, 6
    v_add_u32 v3, s32, v2
    v_lshlrev_b32 v4, 1, v3
    v_xor_b32 v5, 128, v4
    s_lshl_b32 s33, s6, 1
    v_mov_b32 v6, s33
    s_waitcnt lgkmcnt(0)
    buffer_load_ushort v10, v6, s[24:27], 0 offen
    buffer_load_ushort v11, v4, s[8:11], s7 offen
    buffer_load_ushort v12, v4, s[12:15], s7 offen
    buffer_load_ushort v14, v4, s[16:19], s7 offen
    buffer_load_ushort v15, v4, s[20:23], s7 offen
    buffer_load_ushort v16, v5, s[16:19], s7 offen
    buffer_load_ushort v17, v5, s[20:23], s7 offen
    """)
    a(f"s_mul_i32 s34, s4, {53*512}\nv_lshlrev_b32 v7, 2, v3\nv_add_u32 v7, s34, v7")
    for k in range(16):
        a(f"v_xor_b32 v{64+k}, {k*16}, v7")
    a(f"""
    s_mov_b32 s36, {fbits(LOG2E)}
    s_mov_b32 s37, {fbits(1/(2*math.pi))}
    v_lshlrev_b32 v10, 16, v10
    v_mul_f32 v10, s36, v10
    v_exp_f32 v10, v10
    v_lshlrev_b32 v11, 16, v11
    v_mul_f32 v11, s36, v11
    v_exp_f32 v11, v11
    v_lshlrev_b32 v12, 16, v12
    """)
    bf16_round(a, "v10", "v10")
    bf16_round(a, "v11", "v11")
    a("""
    v_mul_f32 v11, v11, v10
    v_mul_f32 v12, v12, v10
    v_mul_f32 v11, s36, v11
    v_mul_f32 v12, s37, v12
    """)
    for i, p in enumerate((1.0, 8.0, 64.0, 256.0)):
        a(f"v_mul_f32 v{30+i}, {fbits(-p)}, v11\nv_mul_f32 v{34+i}, {fbits(p)}, v12")
    for i in range(4):
        a(f"v_exp_f32 v{30+i}, v{30+i}\nv_fract_f32 v{34+i}, v{34+i}")
    for i in range(4):
        a(f"v_cos_f32 v{20+2*i}, v{34+i}\nv_sin_f32 v{21+2*i}, v{34+i}")
    a("""
    v_lshlrev_b32 v14, 16, v14
    v_lshlrev_b32 v15, 16, v15
    v_lshlrev_b32 v16, 16, v16
    v_lshlrev_b32 v17, 16, v17
    v_max3_f32 v16, |v14|, |v15|, |v16|
    v_max_f32 v16, |v16|, |v17|
    """)
    for i in range(4):
        a(f"v_mul_f32 v{20+2*i}, v{20+2*i}, v{30+i}\nv_mul_f32 v{21+2*i}, v{21+2*i}, v{30+i}")
    for k in (8, 4, 2, 1):
        a(f"v_max_f32_dpp v16, v16, v16 row_ror:{k} row_mask:0xf bank_mask:0xf bound_ctrl:1")
    group_allreduce(a, "v16", "v17", "v_max_f32")
    a("""
    v_frexp_exp_i32_f32 v16, v16
    v_sub_u32 v17, 0, v16
    v_ldexp_f32 v14, v14, v17
    v_ldexp_f32 v15, v15, v17
    v_add_u32 v16, 1, v16
    v_ldexp_f32 v10, v10, v16
    """)
    ci = [0]
    def put(row, r, neg):
        t = 56 + ci[0] % 4; ci[0] += 1
        a(f"v_cvt_pk_f16_f32 v{t}, v{r}, {'-' if neg else ''}v{r+1}")
        a(f"ds_write_b32 v{64 + (row & 15)}, v{t} offset:{row*512}")
    E1, E8, E64, E256 = 20, 22, 24, 26
    a("v_mov_b32 v56, 0x3c00\nds_write_b32 v64, v56")
    ci[0] = 1
    P = {1: E8}
    put(1, E8, False)
    R = {0: 14}
    put(32, 14, True)
    Q = {1: E64}
    put(8, E64, False)
    for b in range(2, 8):
        P[b] = 80 + 2*b
        cmul(a, P[b], P[b-1] if b != 4 else P[2], E8 if b != 4 else P[2])
        R[b-1] = 100 + 2*b
        cmul(a, R[b-1], R[b-2], E1)
        put(b, P[b], False); put(32 + b - 1, R[b-1], True)
    R[7] = 116
    cmul(a, R[7], R[6], E1); put(39, R[7], True)
    Q[2], Q[3] = 96, 98
    cmul(a, Q[2], E64, E64); put(16, Q[2], False)
    cmul(a, Q[3], Q[2], E64); put(24, Q[3], False)
    chain0 = [40, 44, 46, 48, 49, 50, 51, 52]
    chain4 = [42, 45, 47]
    jobs = [(q, b) for q in (1, 2, 3) for b in range(1, 8)]
    c0, c4 = R[0], R[4]
    singles = [(41, R[2]), (43, R[6])]
    for i in range(21):
        q, b = jobs[i]
        t = 40 + 2*(i % 4)
        cmul(a, t, P[b], Q[q]); put(8*q + b, t, False)
        if i < 8:
            d = 118 + 2*(i % 2); cmul(a, d, c0, E256); c0 = d; put(chain0[i], d, True)
        elif i < 11:
            d = 122 + 2*(i % 2); cmul(a, d, c4, E256); c4 = d; put(chain4[i-8], d, True)
        elif i < 13:
            row, src = singles[i-11]; cmul(a, 48, src, E256); put(row, 48, True)
    a(f"""
    v_and_b32 v1, 15, v2
    v_lshrrev_b32 v3, 4, v2
    v_xor_b32 v4, v3, v1
    v_lshlrev_b32 v4, 4, v4
    v_min_u32 v5, 4, v1
    v_xor_b32 v6, v3, v5
    v_lshlrev_b32 v6, 4, v6
    v_lshl_add_u32 v4, v1, 9, v4
    v_lshl_add_u32 v6, v5, 9, v6
    v_add_u32 v4, s34, v4
    v_add_u32 v6, s34, v6
    s_lshl_b32 s35, s5, 13
    v_add_u32 v5, s35, v4
    s_waitcnt lgkmcnt(0)
    s_barrier
    """)
    for ks in range(8):
        x = (ks & 3) * 64; o = (ks >> 2) * 256
        b = 20 + 12 * ks
        a(f"v_xor_b32 v8, {x}, v5\nds_read_b128 {vr(b,4)}, v8 offset:{o}")
        a(f"v_xor_b32 v8, {x}, v4\nds_read_b128 {vr(b+4,4)}, v8 offset:{32*512+o}")
        a(f"v_xor_b32 v8, {x}, v6\nds_read_b128 {vr(b+8,4)}, v8 offset:{48*512+o}")
    a(f"""
    s_mul_i32 s38, s6, {UT_PITCH}
    s_add_u32 s38, s38, {WS_UT}
    s_lshl_b32 s35, s5, 4
    v_add_u32 v1, s35, v1
    v_lshlrev_b32 v8, 4, v1
    v_add_u32 v9, 8, v8
    v_cmp_eq_u32 vcc, 1, v3
    v_cndmask_b32 v8, v8, v9, vcc
    v_lshlrev_b32 v9, 3, v1
    v_add_u32 v9, 512, v9
    v_cmp_eq_u32 vcc, 2, v3
    v_cndmask_b32 v8, v8, v9, vcc
    v_lshlrev_b32 v9, 2, v1
    v_add_u32 v9, 768, v9
    v_cmp_eq_u32 vcc, 3, v3
    v_cndmask_b32 v8, v8, v9, vcc
    v_add_u32 v9, 4, v8
    v_add_u32 v11, 128, v8
    v_cndmask_b32 v9, v9, v11, vcc
    v_lshlrev_b32 v11, 1, v1
    v_add_u32 v11, 1024, v11
    v_mov_b32 v12, {OOB}
    v_cmp_eq_u32 vcc, 0, v3
    v_cndmask_b32 v11, v12, v11, vcc
    v_mov_b32 v13, 1280
    v_lshl_add_u32 v14, v3, 5, v1
    v_cmp_eq_u32 vcc, 32, v14
    v_cndmask_b32 v13, v11, v13, vcc
    """)
    for ks in range(8):
        b = 20 + 12 * ks
        c0_, c1_ = ("0", "0") if ks == 0 else ("v[120:123]", "v[124:127]")
        a(f"v_mfma_f32_16x16x32_f16 v[120:123], {vr(b+4,4)}, {vr(b,4)}, {c0_}")
        a(f"v_mfma_f32_16x16x32_f16 v[124:127], {vr(b+8,4)}, {vr(b,4)}, {c1_}")
    a(f"""
    s_lshl_b32 s39, s6, 2
    s_add_u32 s39, s39, {WS_KSC}
    v_cmp_eq_u32 vcc, 0, v14
    v_cndmask_b32 v14, v12, v14, vcc
    buffer_store_dword v10, v14, s[28:31], s39 offen
    v_cvt_pk_f16_f32 v20, v120, v121
    v_cvt_pk_f16_f32 v21, v122, v123
    v_cvt_pk_f16_f32 v22, v124, v125
    v_cvt_pk_f16_f32 v23, v126, v127
    buffer_store_dword v20, v8, s[28:31], s38 offen
    buffer_store_dword v21, v9, s[28:31], s38 offen
    buffer_store_short v22, v13, s[28:31], s38 offen
    buffer_store_short_d16_hi v22, v11, s[28:31], s38 offen offset:64
    buffer_store_short v23, v11, s[28:31], s38 offen offset:128
    buffer_store_short_d16_hi v23, v11, s[28:31], s38 offen offset:192
    s_endpgm
    """)

def ln1(a):
    PITCH = 1168
    load_srds(a, [("u", 8), ("ws", 28)])
    a(f"""
    s_sub_u32 s3, s2, {N_KGEN}
    v_lshrrev_b32 v1, 4, v0
    v_and_b32 v2, 15, v0
    s_mul_i32 s4, s3, {16*1152}
    v_mul_u32_u24 v3, 1152, v1
    v_lshl_add_u32 v4, v2, 3, v3
    v_lshl_add_u32 v3, v2, 4, v3
    s_waitcnt lgkmcnt(0)
    """)
    for u in range(4):
        a(f"buffer_load_dwordx4 {vr(8+4*u,4)}, v3, s[8:11], s4 offen offset:{256*u}")
    a("buffer_load_dwordx2 v[24:25], v4, s[8:11], s4 offen offset:1024")
    a(f"""
    v_mul_u32_u24 v5, {PITCH}, v1
    v_lshl_add_u32 v6, v2, 3, v5
    v_lshl_add_u32 v5, v2, 4, v5
    s_mov_b32 s6, 0x3f803f80
    v_mov_b32 v26, 0
    v_mov_b32 v27, 0
    """)
    for i in range(18):
        a(f"v_dot2c_f32_bf16 v{26 + i % 2}, s6, v{8+i}")
    XO = 16 * PITCH
    for u in range(4):
        a(f"ds_write_b128 v5, {vr(8+4*u,4)} offset:{XO + 256*u}")
    a(f"ds_write_b64 v6, v[24:25] offset:{XO + 1024}")
    a("v_add_f32 v26, v26, v27")
    row_allreduce_add(a, "v26")
    a(f"v_mul_f32 v26, {fbits(1/576)}, v26")
    bf16_round(a, "v28", "v26")
    a("v_sub_f32 v26, v26, v28\nv_mov_b32 v29, v28\nv_mov_b32 v30, 0\nv_mov_b32 v31, 0")
    for i in range(18):
        a(f"v_lshlrev_b32 v{32+2*i}, 16, v{8+i}\nv_and_b32 v{33+2*i}, 0xffff0000, v{8+i}")
        a(f"v_pk_add_f32 {vr(32+2*i,2)}, {vr(32+2*i,2)}, v[28:29] neg_lo:[0,1] neg_hi:[0,1]")
        a(f"v_pk_fma_f32 v[30:31], {vr(32+2*i,2)}, {vr(32+2*i,2)}, v[30:31]")
    a("v_add_f32 v30, v30, v31")
    row_allreduce_add(a, "v30")
    a(f"v_mul_f32 v30, {fbits(1/576)}, v30\nv_fma_f32 v30, -v26, v26, v30\nv_max_f32 v30, 0, v30")
    bf16_round(a, "v30", "v30")
    a(f"v_add_f32 v30, {fbits(1e-5)}, v30")
    bf16_round(a, "v30", "v30")
    a("v_sqrt_f32 v30, v30")
    bf16_round(a, "v30", "v30")
    a("v_rcp_f32 v30, v30\nv_mov_b32 v31, v30")
    for i in range(18):
        a(f"v_pk_mul_f32 {vr(32+2*i,2)}, {vr(32+2*i,2)}, v[30:31]")
        a(f"v_cvt_pk_f16_f32 v{8+i}, v{32+2*i}, v{33+2*i}")
    for u in range(4):
        a(f"ds_write_b128 v5, {vr(8+4*u,4)} offset:{256*u}")
    a("ds_write_b64 v6, v[24:25] offset:1024")
    a(f"""
    v_lshrrev_b32 v1, 6, v0
    v_readfirstlane_b32 s5, v1
    v_bfe_u32 v1, v0, 4, 1
    v_bfe_u32 v3, v0, 5, 1
    v_bfe_u32 v4, v0, 2, 2
    v_and_b32 v5, 3, v0
    v_lshlrev_b32 v5, 3, v5
    v_lshl_add_u32 v5, v3, 5, v5
    v_lshl_add_u32 v6, v1, 3, v4
    v_mul_u32_u24 v6, {PITCH}, v6
    v_add_u32 v6, v6, v5
    v_lshlrev_b32 v7, 3, v1
    v_sub_u32 v7, v7, v4
    v_add_u32 v7, 3, v7
    v_mul_u32_u24 v7, {PITCH}, v7
    v_add_u32 v7, v7, v5
    v_lshl_add_u32 v4, v3, 4, v2
    v_lshlrev_b32 v4, 5, v4
    v_lshl_add_u32 v4, v1, 4, v4
    s_mul_i32 s4, s3, 18432
    s_lshl_b32 s7, s5, 6
    v_add_u32 v6, s7, v6
    v_add_u32 v7, s7, v7
    s_lshl_b32 s7, s5, 10
    s_add_u32 s4, s4, s7
    s_add_u32 s32, s4, {WS_NT}
    s_add_u32 s33, s4, {WS_XT}
    s_waitcnt lgkmcnt(0)
    s_barrier
    """)
    lab = a.label("ln_skip")
    for i in range(5):
        if i == 4:
            a(f"s_cmp_ge_u32 s5, 2\ns_cbranch_scc1 {lab}")
        b = 8 + 8 * i
        a(f"ds_read_b64_tr_b16 {vr(b,2)}, v7 offset:{4*PITCH + 256*i}")
        a(f"ds_read_b64_tr_b16 {vr(b+2,2)}, v7 offset:{256*i}")
        a(f"ds_read_b64_tr_b16 {vr(b+4,2)}, v6 offset:{XO + 256*i}")
        a(f"ds_read_b64_tr_b16 {vr(b+6,2)}, v6 offset:{XO + 4*PITCH + 256*i}")
        a(f"buffer_store_dwordx4 {vr(b,4)}, v4, s[28:31], s32 offen")
        a(f"buffer_store_dwordx4 {vr(b+4,4)}, v4, s[28:31], s33 offen")
        a("s_add_u32 s32, s32, 4096\ns_add_u32 s33, s33, 4096")
    a(f"{lab}:\ns_endpgm")

def mod(a):
    load_srds(a, [("wmod", 8), ("c", 12), ("ws", 28)])
    a(f"""
    s_sub_u32 s3, s2, {N_KGEN + N_LN}
    s_mul_hi_u32 s4, s3, {(2**32 + 53)//54}
    s_mul_i32 s5, s4, 54
    s_sub_u32 s5, s3, s5
    v_lshrrev_b32 v1, 3, v0
    v_and_b32 v2, 7, v0
    s_mul_i32 s6, s4, {144*6912}
    s_lshl_b32 s7, s5, 7
    s_add_u32 s6, s6, s7
    v_mul_u32_u24 v3, 6912, v1
    v_lshl_add_u32 v3, v2, 4, v3
    v_mov_b32 v5, {OOB}
    v_cmp_gt_u32 vcc, 16, v1
    v_cndmask_b32 v4, v5, v3, vcc
    v_lshlrev_b32 v6, 1, v1
    v_cndmask_b32 v7, v5, v6, vcc
    s_mul_i32 s32, s4, 288
    s_waitcnt lgkmcnt(0)
    """)
    for u in range(5):
        a(f"buffer_load_ushort v{40+u}, {'v6' if u < 4 else 'v7'}, s[12:15], s32 offen offset:{64*u}")
    for u in range(5):
        a(f"buffer_load_dwordx4 {vr(8+4*u,4)}, {'v3' if u < 4 else 'v4'}, s[8:11], s6 offen")
        if u < 4: a(f"s_add_u32 s6, s6, {32*6912}")
    a(f"s_mov_b32 s33, {fbits(-LOG2E)}")
    for u in range(5):
        x, t = 40 + u, 46 + u
        a(f"v_lshlrev_b32 v{x}, 16, v{x}\nv_mul_f32 v{t}, s33, v{x}\nv_exp_f32 v{t}, v{t}")
    for u in range(5):
        x, t = 40 + u, 46 + u
        a(f"v_add_f32 v{t}, 1.0, v{t}\nv_rcp_f32 v{t}, v{t}")
    for u in range(5):
        x, t = 40 + u, 46 + u
        a(f"v_mul_f32 v{x}, v{x}, v{t}")
        bf16_round(a, f"v{x}", f"v{x}")
    for u in range(5):
        for i in range(4):
            a(f"v_lshlrev_b32 v52, 16, v{8+4*u+i}\nv_and_b32 v53, 0xffff0000, v{8+4*u+i}")
            s = 40 + u
            sp, sel = (s & ~1), s & 1
            if u == 0:
                a(f"v_pk_mul_f32 {vr(30+2*i,2)}, v[52:53], {vr(sp,2)} op_sel:[0,{sel}] op_sel_hi:[1,{sel}]")
            else:
                a(f"v_pk_fma_f32 {vr(30+2*i,2)}, v[52:53], {vr(sp,2)}, {vr(30+2*i,2)} op_sel:[0,{sel},0] op_sel_hi:[1,{sel},1]")
    for i in range(8):
        a(f"v_add_f32_dpp v{30+i}, v{30+i}, v{30+i} row_ror:8 row_mask:0xf bank_mask:0xf bound_ctrl:1")
    for i in range(4):
        a(f"v_permlane16_swap_b32 v{30+i}, v{34+i}")
    for i in range(4):
        a(f"v_add_f32 v{30+i}, v{30+i}, v{34+i}")
    for i in range(2):
        a(f"v_permlane32_swap_b32 v{30+i}, v{32+i}")
    a(f"""
    v_add_f32 v30, v30, v32
    v_add_f32 v31, v31, v33
    v_bfe_u32 v4, v0, 4, 1
    v_bfe_u32 v5, v0, 5, 1
    v_lshrrev_b32 v6, 6, v0
    v_lshlrev_b32 v2, 5, v2
    v_lshl_add_u32 v2, v4, 4, v2
    v_lshl_add_u32 v2, v5, 3, v2
    v_lshl_add_u32 v2, v6, 8, v2
    ds_write_b64 v2, v[30:31]
    v_and_b32 v1, 63, v0
    v_lshlrev_b32 v1, 2, v1
    s_mul_i32 s6, s4, {3456*4}
    s_lshl_b32 s7, s5, 8
    s_add_u32 s6, s6, s7
    s_add_u32 s6, s6, {WS_MODP}
    s_waitcnt lgkmcnt(0)
    s_barrier
    ds_read2st64_b32 v[8:9], v1 offset0:0 offset1:1
    ds_read2st64_b32 v[10:11], v1 offset0:2 offset1:3
    v_mov_b32 v5, {OOB}
    v_cmp_gt_u32 vcc, 64, v0
    v_cndmask_b32 v1, v5, v1, vcc
    v_add_f32 v8, v8, v9
    v_add_f32 v10, v10, v11
    v_add_f32 v8, v8, v10
    buffer_store_dword v8, v1, s[28:31], s6 offen
    s_endpgm
    """)

def k0(a, name="k0_kernel"):
    a.kernel(name, N_KGEN + N_LN + N_MOD, 256, LDS0, 128, sgpr=48)
    a(f"""
    s_cmp_ge_u32 s2, {N_KGEN + N_LN + N_MOD}
    s_cbranch_scc1 k0_exit
    s_cmp_ge_u32 s2, {N_KGEN + N_LN}
    s_cbranch_scc1 k0_mod
    s_cmp_ge_u32 s2, {N_KGEN}
    s_cbranch_scc1 k0_ln
    """)
    kgen(a)
    a("k0_ln:"); ln1(a)
    a("k0_mod:"); mod(a)
    a("k0_exit:\ns_endpgm")

if __name__ == "__main__":
    a = Asm(); k0(a); open("k0_tmp.s", "w").write(a.text()); print(a.stats)
```

```python
from common import *
N_CONV, N_TRANS = 144, 108
LDS1 = 3 * 36864
CHP = 22048
COPY = [0, 544 * 8, 1066 * 8, 1588 * 8]
HIMG = 16864

def conv(a):
    load_srds(a, [("ws", 28), ("dsk", 12)])
    a(f"""
    v_lshrrev_b32 v1, 6, v0
    v_and_b32 v2, 63, v0
    v_readfirstlane_b32 s3, v1
    s_lshl_b32 s4, s2, 2
    s_add_u32 s5, s4, s3
    v_and_b32 v3, 3, v2
    v_bfe_u32 v4, v2, 2, 2
    v_lshrrev_b32 v5, 4, v2
    v_mul_u32_u24 v3, {3456*4}, v3
    v_mul_u32_u24 v6, {576*4}, v5
    v_add_u32 v3, v3, v6
    v_lshl_add_u32 v3, v4, 2, v3
    s_lshl_b32 s6, s4, 2
    s_add_u32 s6, s6, {WS_MODP}
    s_mul_i32 s7, s5, {UT_PITCH}
    s_add_u32 s7, s7, {WS_UT}
    v_lshlrev_b32 v6, 3, v2
    v_lshlrev_b32 v7, 2, v2
    v_lshrrev_b32 v8, 3, v2
    v_and_b32 v9, 7, v2
    v_mul_u32_u24 v10, 18432, v8
    v_lshl_add_u32 v10, v9, 4, v10
    s_mul_i32 s32, s3, {8*18432}
    s_lshl_b32 s33, s4, 5
    s_add_u32 s32, s32, s33
    s_add_u32 s32, s32, {WS_NT}
    s_lshl_b32 s34, s5, 1
    v_mov_b32 v11, s34
    s_lshl_b32 s35, s5, 2
    s_add_u32 s35, s35, {WS_KSC}
    v_mov_b32 v12, 0
    s_waitcnt lgkmcnt(0)
    buffer_load_dword v16, v3, s[28:31], s6 offen
    buffer_load_dwordx4 v[20:23], v6, s[28:31], s7 offen
    buffer_load_dwordx2 v[24:25], v7, s[28:31], s7 offen offset:512
    buffer_load_dwordx2 v[26:27], v7, s[28:31], s7 offen offset:768
    buffer_load_dwordx2 v[28:29], v7, s[28:31], s7 offen offset:1024
    """)
    for u in range(4):
        a(f"buffer_load_dwordx4 {vr(32+4*u,4)}, v10, s[28:31], s32 offen")
        if u < 3: a(f"s_add_u32 s32, s32, {32*18432}")
    a(f"""
    buffer_load_dword v17, v12, s[28:31], s35 offen
    buffer_load_ushort v18, v11, s[12:15], 0 offen
    v_and_b32 v13, 15, v2
    v_lshlrev_b32 v14, 1, v13
    v_lshrrev_b32 v15, 1, v5
    v_add_u32 v14, v14, v15
    v_mul_u32_u24 v14, 18432, v14
    v_and_b32 v15, 1, v5
    v_lshl_add_u32 v14, v15, 4, v14
    s_lshl_b32 s36, s5, 5
    s_add_u32 s36, s36, {WS_XT}
    """)
    for t in range(4):
        a(f"buffer_load_dwordx4 {vr(96+4*t,4)}, v14, s[28:31], s36 offen")
        if t < 3: a(f"s_add_u32 s36, s36, {32*18432}")
    a(f"""
    s_mul_i32 s37, s3, {CHP}
    v_lshlrev_b32 v48, 3, v2
    v_add_u32 v48, s37, v48
    v_lshlrev_b32 v49, 4, v2
    v_add_u32 v49, s37, v49
    v_lshlrev_b32 v50, 5, v2
    v_add_u32 v50, s37, v50
    v_mul_u32_u24 v51, 1280, v5
    v_lshl_add_u32 v51, v13, 4, v51
    v_add_u32 v51, s37, v51
    v_mov_b32 v52, 0
    v_mov_b32 v53, 0
    v_mov_b32 v54, 0
    v_mov_b32 v55, 0
    ds_write_b128 v51, v[52:55] offset:{HIMG}
    v_bfe_u32 v56, v2, 1, 2
    v_mul_u32_u24 v57, {CHP}, v56
    v_and_b32 v58, 1, v8
    v_lshlrev_b32 v58, 1, v58
    v_and_b32 v59, 1, v2
    v_add_u32 v58, v58, v59
    v_mul_u32_u24 v58, 1280, v58
    v_add_u32 v57, v57, v58
    v_lshrrev_b32 v58, 1, v8
    v_lshl_add_u32 v57, v58, 4, v57
    s_lshl_b32 s38, s3, 6
    v_add_u32 v57, s38, v57
    v_lshlrev_b32 v56, 4, v56
    v_add_u32 v58, 64, v56
    v_bfe_u32 v60, v2, 3, 2
    v_cmp_eq_u32 vcc, 1, v60
    v_mov_b32 v61, {COPY[1]}
    v_cndmask_b32 v61, 0, v61, vcc
    v_cmp_eq_u32 vcc, 2, v60
    v_mov_b32 v62, {COPY[2]}
    v_cndmask_b32 v61, v61, v62, vcc
    v_cmp_eq_u32 vcc, 3, v60
    v_mov_b32 v62, {COPY[3]}
    v_cndmask_b32 v61, v61, v62, vcc
    v_lshl_add_u32 v61, v9, 3, v61
    v_add_u32 v61, s37, v61
    v_cmp_eq_u32 vcc, 63, v2
    v_mov_b32 v62, 0x03020100
    v_mov_b32 v63, 0x01000100
    v_cndmask_b32 v62, v62, v63, vcc
    v_mov_b32 v63, 0x07060504
    v_mov_b32 v64, 0x03020302
    v_cndmask_b32 v63, v63, v64, vcc
    s_mov_b32 s40, 0x01000100
    s_mov_b32 s41, 0x03020302
    s_mov_b32 s42, 0x05040302
    """)
    a("""
    v_add_f32_dpp v16, v16, v16 quad_perm:[1,0,3,2] row_mask:0xf bank_mask:0xf bound_ctrl:1
    v_add_f32_dpp v16, v16, v16 quad_perm:[2,3,0,1] row_mask:0xf bank_mask:0xf bound_ctrl:1
    """)
    bf16_round(a, "v16", "v16")
    a("""
    ds_bpermute_b32 v65, v56, v16
    ds_bpermute_b32 v66, v58, v16
    s_lshl_b32 s39, s3, 2
    s_add_u32 s39, s39, 32
    v_readlane_b32 s43, v16, s39
    """)
    a(f"""
    v_readfirstlane_b32 s44, v20
    v_readfirstlane_b32 s45, v21
    s_lshl_b32 s46, s44, 16
    s_lshr_b32 s47, s44, 16
    s_lshl_b32 s45, s45, 16
    s_or_b32 s47, s47, s45
    v_writelane_b32 v53, s46, 15
    v_writelane_b32 v53, s44, 23
    v_writelane_b32 v52, s46, 31
    v_writelane_b32 v53, s47, 31
    s_mov_b32 exec_hi, 0
    ds_write_b64 v61, v[52:53]
    s_mov_b32 exec_hi, -1
    v_perm_b32 v23, v23, v22, v63
    v_perm_b32 v22, v22, v22, v62
    ds_write_b64 v48, v[20:21] offset:{COPY[0] + 64}
    v_alignbit_b32 v68, v21, v20, 16
    v_alignbit_b32 v69, v22, v21, 16
    ds_write_b64 v48, v[68:69] offset:{COPY[1] + 64}
    v_mov_b32 v70, v21
    v_mov_b32 v71, v22
    ds_write_b64 v48, v[70:71] offset:{COPY[2] + 64}
    v_mov_b32 v72, v69
    v_alignbit_b32 v73, v23, v22, 16
    ds_write_b64 v48, v[72:73] offset:{COPY[3] + 64}
    """)
    def gen(kind, dst, d0, d1):
        return {"P00": f"v_perm_b32 v{dst}, v{d0}, v{d0}, s40", "P01": f"v_mov_b32 v{dst}, v{d0}",
                "P11": f"v_perm_b32 v{dst}, v{d0}, v{d0}, s41", "P12": f"v_alignbit_b32 v{dst}, v{d1}, v{d0}, 16",
                "P22": f"v_perm_b32 v{dst}, v{d1}, v{d1}, s40", "P23": f"v_perm_b32 v{dst}, v{d1}, v{d1}, v62"}[kind]
    segs = [(24, [0, 0, 1, 2, 2, 2, 3], 2, "v48", 72 * 8),
            (26, [0, 0, 0, 1, 1, 1, 2, 2, 2, 2, 2], 4, "v49", 136 * 8),
            (28, [0] * 5 + [1] * 7 + [2] * 7, 8, "v50", 264 * 8)]
    tmp = [68]
    for d0, e, nd, adr, off in segs:
        cache = {}
        for c in range(4):
            dw = [f"P{e[c+2*i]}{e[c+2*i+1]}" for i in range(nd)]
            step = min(nd, 4)
            for h in range(0, nd, step):
                key = tuple(dw[h:h+step])
                if key not in cache:
                    t = tmp[0]; tmp[0] = 68 + (t - 68 + 4) % 24
                    cache = {k: v for k, v in cache.items() if v != t}
                    for i, k in enumerate(key): a(gen(k, t + i, d0, d0 + 1))
                    cache[key] = t
                t = cache[key]
                a(f"ds_write_b{32*step} {adr}, {vr(t,step)} offset:{COPY[c] + off + 4*h}")
    a(f"""
    v_add_f32 v66, 1.0, v66
    """)
    bf16_round(a, "v66", "v66")
    a(f"""
    s_mov_b32 s48, {fbits(24.0)}
    v_fma_f32 v67, |v66|, s48, |v65|
    v_frexp_exp_i32_f32 v67, v67
    v_sub_u32 v67, 14, v67
    v_ldexp_f32 v65, v65, v67
    v_ldexp_f32 v66, v66, v67
    v_cvt_pk_f16_f32 v65, v65, v65
    v_cvt_pk_f16_f32 v66, v66, v66
    s_lshl_b32 s39, s3, 1
    v_readlane_b32 s49, v67, s39
    """)
    for u in range(4):
        for i in range(4):
            a(f"v_pk_fma_f16 v{32+4*u+i}, v{32+4*u+i}, v66, v65")
        a(f"ds_write_b128 v57, {vr(32+4*u,4)} offset:{HIMG + 256 + 256*u}")
    a(f"""
    s_sub_u32 s49, 0, s49
    v_lshlrev_b32 v18, 16, v18
    v_mul_f32 v17, s43, v17
    v_mul_f32 v18, s43, v18
    v_ldexp_f32 v17, v17, s49
    v_ldexp_f32 v18, v18, s49
    v_and_b32 v3, 3, v13
    v_add_u32 v3, 1, v3
    v_lshrrev_b32 v4, 2, v3
    v_and_b32 v3, 3, v3
    v_cmp_eq_u32 vcc, 1, v3
    v_mov_b32 v6, {COPY[1]}
    v_cndmask_b32 v6, 0, v6, vcc
    v_cmp_eq_u32 vcc, 2, v3
    v_mov_b32 v7, {COPY[2]}
    v_cndmask_b32 v6, v6, v7, vcc
    v_cmp_eq_u32 vcc, 3, v3
    v_mov_b32 v7, {COPY[3]}
    v_cndmask_b32 v6, v6, v7, vcc
    v_lshrrev_b32 v7, 2, v13
    v_add_u32 v7, v7, v5
    v_lshl_add_u32 v7, v7, 1, v4
    v_lshl_add_u32 v6, v7, 3, v6
    v_add_u32 v6, s37, v6
    v_sub_u32 v7, 3, v5
    v_mul_u32_u24 v7, 1280, v7
    v_lshl_add_u32 v7, v13, 4, v7
    v_add_u32 v7, s37, v7
    s_waitcnt lgkmcnt(0)
    s_barrier
    """)
    ACC = 112
    def bufs(dp):
        b = 144 + 40 * (dp & 1)
        return [b + 6 * v for v in range(4)], [b + 24 + 4 * u for u in range(4)]
    def reads(dp):
        A, W = bufs(dp)
        rw = lambda u: f"ds_read_b128 {vr(W[u],4)}, v7 offset:{HIMG + 16 + (16*u - dp + 15) * 16}"
        ra = lambda v: [f"ds_read_b64 {vr(A[v]+2*m,2)}, v6 offset:{64*(dp + 16*v) + 8*m}" for m in range(3)]
        return [rw(0)] + ra(0) + [rw(1), rw(2), rw(3)] + ra(1) + ra(2) + ra(3)
    for x in reads(0): a(x)
    for dp in range(16):
        A, W = bufs(dp)
        mf = []
        for v in range(4):
            for u in range(4 - v):
                for rt in range(2):
                    acc = vr(ACC + 8 * (u + v) + 4 * rt, 4)
                    c = "0" if (dp == 0 and v == 0) else acc
                    mf.append(f"v_mfma_f32_16x16x32_f16 {acc}, {vr(A[v]+2*rt,4)}, {vr(W[u],4)}, {c}")
        if dp < 15:
            fill = reads(dp + 1)
        else:
            fill = [f"ds_read_b128 {vr(32+4*t,4)}, v51 offset:{HIMG + 256 + 256*t}" for t in range(4)]
        for x in interleave(mf, fill, 0, 16): a(x)
    a(f"""
    v_lshlrev_b32 v3, 6, v13
    v_lshl_add_u32 v3, v5, 4, v3
    s_lshl_b32 s6, s5, 12
    s_add_u32 s6, s6, {WS_X1T}
    """)
    for t in range(4):
        for i in range(8):
            x = 96 + 4 * t + i // 2; h = 32 + 4 * t + (7 - i) // 2
            d = 48 + i
            a(f"v_lshlrev_b32 v{d}, 16, v{x}" if i % 2 == 0 else f"v_and_b32 v{d}, 0xffff0000, v{x}")
            a(f"v_fmac_f32 v{d}, v{ACC + 8*t + i}, v17")
            a(f"v_fma_mix_f32 v{d}, v{h}, v18, v{d} op_sel:[{(7-i)&1},0,0] op_sel_hi:[1,0,0]")
        for i in range(4):
            a(f"v_cvt_pk_bf16_f32 v{56 + 4*(t&1) + i}, v{48+2*i}, v{49+2*i}")
        a(f"buffer_store_dwordx4 {vr(56 + 4*(t&1),4)}, v3, s[28:31], s6 offen offset:{1024*t}")
    a("s_endpgm")

def trans(a):
    ex = a.label("tr_exit")
    a(f"""
    v_lshrrev_b32 v1, 6, v0
    v_and_b32 v2, 63, v0
    v_readfirstlane_b32 s3, v1
    s_cmp_ge_u32 s3, 3
    s_cbranch_scc1 {ex}
    s_load_dwordx2 s[28:29], s[0:1], {ARG['ws']}
    s_load_dwordx4 s[12:15], s[0:1], {ARG['w1']}
    s_load_dwordx4 s[16:19], s[0:1], {ARG['w3']}
    s_mov_b32 s30, {SIZE['ws']}
    s_mov_b32 s31, 0x20000
    s_sub_u32 s4, s2, {N_CONV}
    s_mul_i32 s4, s4, 3
    s_add_u32 s4, s4, s3
    s_and_b32 s5, s4, 1
    s_lshr_b32 s4, s4, 1
    s_mul_hi_u32 s6, s4, {(2**32 + 8)//9}
    s_mul_i32 s7, s6, 9
    s_sub_u32 s7, s4, s7
    s_sub_u32 s32, s6, 8
    s_mul_i32 s32, s32, {576*1152}
    s_mov_b32 s10, {SIZE['w1']}
    s_mov_b32 s34, 1152
    s_waitcnt lgkmcnt(0)
    s_cmp_eq_u32 s6, 16
    s_cselect_b32 s8, s12, s14
    s_cselect_b32 s9, s13, s15
    s_cmp_lt_u32 s6, 16
    s_cselect_b32 s8, s18, s8
    s_cselect_b32 s9, s19, s9
    s_cselect_b32 s10, {SIZE['w4']}, s10
    s_cselect_b32 s32, s32, 0
    s_mul_i32 s33, s6, 1152
    s_cmp_lt_u32 s6, 8
    s_cselect_b32 s8, s16, s8
    s_cselect_b32 s9, s17, s9
    s_cselect_b32 s32, s33, s32
    s_cselect_b32 s33, 9216, s34
    s_mov_b32 s11, 0x20000
    s_lshl_b32 s34, s7, 7
    s_add_u32 s32, s32, s34
    s_mul_i32 s34, s33, 288
    s_mul_i32 s34, s34, s5
    s_add_u32 s32, s32, s34
    s_lshl_b32 s34, s33, 3
    v_lshrrev_b32 v3, 3, v2
    v_mul_lo_u32 v3, v3, s33
    v_and_b32 v4, 7, v2
    v_lshl_add_u32 v3, v4, 4, v3
    s_mul_i32 s35, s3, 36864
    s_mov_b32 m0, s35
    """)
    for i in range(36):
        a("buffer_load_dwordx4 v3, s[8:11], s32 offen lds")
        if i < 35: a("s_add_u32 m0, m0, 1024\ns_add_u32 s32, s32, s34")
    a(f"""
    v_lshrrev_b32 v4, 4, v2
    v_bfe_u32 v5, v2, 2, 2
    v_lshl_add_u32 v5, v4, 3, v5
    v_and_b32 v6, 3, v2
    v_lshlrev_b32 v5, 7, v5
    v_lshl_add_u32 v5, v6, 4, v5
    v_add_u32 v5, s35, v5
    v_lshlrev_b32 v7, 4, v2
    s_cmp_ge_u32 s6, 16
    s_mov_b32 s41, 1024
    s_cselect_b32 s41, 18432, s41
    s_cselect_b32 s42, 1024, s34
    s_lshr_b32 s43, s6, 3
    s_cmp_eq_u32 s43, 0
    s_cselect_b32 s42, 3072, s42
    s_mul_i32 s36, s6, {WBLK}
    s_mul_i32 s37, s5, 9
    s_mul_i32 s37, s37, s42
    s_add_u32 s36, s36, s37
    s_add_u32 s36, s36, {WS_WT}
    s_mov_b32 s38, 0x3f803f80
    """)
    for t in range(4):
        a(f"""
        s_lshl_b32 s44, s7, 2
        s_add_u32 s44, s44, {t}
        s_mul_i32 s45, s44, 43
        s_lshr_b32 s45, s45, 7
        s_mul_i32 s46, s44, 57
        s_lshr_b32 s46, s46, 9
        s_cmp_eq_u32 s43, 1
        s_cselect_b32 s45, s46, s45
        s_cselect_b32 s46, 9, 3
        s_mul_i32 s47, s45, s46
        s_sub_u32 s44, s44, s47
        s_sub_u32 s48, s46, 1
        s_cmp_eq_u32 s44, 0
        s_cselect_b32 s48, s46, s44
        s_sub_u32 s48, s48, 1
        s_bitcmp1_b32 s45, 0
        s_cselect_b32 s44, s48, s44
        s_mul_i32 s47, s47, 18432
        s_mul_i32 s44, s44, s41
        s_add_u32 s44, s44, s47
        v_add_u32 v{8+t}, s44, v7
        """)
    for t in range(4): a(f"v_mov_b32 v{12+t}, 0")
    for u in range(9):
        b = 16 + 16 * (u & 1)
        a("s_waitcnt vmcnt(32)")
        for t in range(4):
            for h in range(2):
                a(f"ds_read_b64_tr_b16 {vr(b+4*t+2*h,2)}, v5 offset:{u*4096 + h*512 + (t>>1)*64 + (t&1)*8}")
        for t in range(4):
            a(f"buffer_store_dwordx4 {vr(b+4*t,4)}, v{8+t}, s[28:31], s36 offen")
        for i in range(4):
            for t in range(4):
                a(f"v_dot2c_f32_bf16 v{12+t}, s38, v{b+4*t+i}")
        a("s_add_u32 s36, s36, s42")
    a(f"""
    s_cmp_eq_u32 s6, 17
    s_cbranch_scc1 {ex}
    s_cmp_ge_u32 s6, 8
    s_cselect_b32 s39, 1, 0
    s_cmp_lt_u32 s6, 16
    s_cselect_b32 s40, s39, 0
    s_cmp_eq_u32 s40, 1
    s_cbranch_scc1 {ex}
    """)
    for t in range(4): group_allreduce(a, f"v{12+t}", "v48")
    a(f"""
    v_cmp_eq_u32 vcc, 1, v4
    v_cndmask_b32 v12, v12, v13, vcc
    v_cmp_eq_u32 vcc, 2, v4
    v_cndmask_b32 v12, v12, v14, vcc
    v_cmp_eq_u32 vcc, 3, v4
    v_cndmask_b32 v12, v12, v15, vcc
    v_bfe_u32 v5, v2, 2, 2
    v_lshlrev_b32 v5, 3, v5
    v_add_u32 v5, v5, v6
    v_bfe_u32 v6, v2, 4, 1
    v_lshl_add_u32 v5, v6, 2, v5
    v_bfe_u32 v6, v2, 5, 1
    v_lshl_add_u32 v5, v6, 5, v5
    v_lshlrev_b32 v5, 2, v5
    s_mul_i32 s36, s6, {576*4}
    s_mul_i32 s37, s5, {4608*4}
    s_add_u32 s36, s36, s37
    s_add_u32 s36, s36, {WS_CS3}
    s_mul_i32 s37, s5, {576*4}
    s_add_u32 s37, s37, {WS_CS1}
    s_cmp_eq_u32 s6, 16
    s_cselect_b32 s36, s37, s36
    s_lshl_b32 s37, s7, 8
    s_add_u32 s36, s36, s37
    buffer_store_dword v12, v5, s[28:31], s36 offen
    {ex}:
    s_endpgm
    """)

def modf(a):
    load_srds(a, [("ws", 28)])
    a(f"""
    v_lshlrev_b32 v1, 4, v0
    v_mov_b32 v2, {OOB}
    v_cmp_gt_u32 vcc, 144, v0
    v_cndmask_b32 v1, v2, v1, vcc
    s_waitcnt lgkmcnt(0)
    """)
    for w in range(3):
        for k in range(4):
            a(f"s_mov_b32 s4, {WS_MODP + k*13824 + (3+w)*2304}")
            a(f"buffer_load_dwordx4 {vr(8+16*w+4*k,4)}, v1, s[28:31], s4 offen")
    for w in range(3):
        b = 8 + 16 * w
        for i in range(4):
            a(f"v_add_f32 v{b+i}, v{b+i}, v{b+4+i}\nv_add_f32 v{b+8+i}, v{b+8+i}, v{b+12+i}\nv_add_f32 v{b+i}, v{b+i}, v{b+8+i}")
            bf16_round(a, f"v{b+i}", f"v{b+i}")
            if w == 1:
                a(f"v_add_f32 v{b+i}, 1.0, v{b+i}")
                bf16_round(a, f"v{b+i}", f"v{b+i}")
        a(f"s_mov_b32 s4, {WS_MODF + w*2304}")
        a(f"buffer_store_dwordx4 {vr(b,4)}, v1, s[28:31], s4 offen")
    a("s_endpgm")

def k1(a, name="k1_kernel"):
    a.kernel(name, N_CONV + N_TRANS + 1, 256, LDS1, 224, sgpr=56)
    a(f"""
    s_cmp_gt_u32 s2, {N_CONV + N_TRANS}
    s_cbranch_scc1 k1_exit
    s_cmp_eq_u32 s2, {N_CONV + N_TRANS}
    s_cbranch_scc1 k1_modf
    s_cmp_ge_u32 s2, {N_CONV}
    s_cbranch_scc1 k1_trans
    """)
    conv(a)
    a("k1_trans:"); trans(a)
    a("k1_modf:"); modf(a)
    a("k1_exit:\ns_endpgm")

if __name__ == "__main__":
    a = Asm(); k1(a); open("k1_tmp.s", "w").write(a.text()); print(a.stats)
```

```python
from common import *

def decode(a):
    a("""
    v_lshrrev_b32 v1, 6, v0
    v_and_b32 v2, 63, v0
    v_readfirstlane_b32 s3, v1
    s_and_b32 s5, s2, 7
    s_lshl_b32 s5, s5, 3
    s_lshr_b32 s6, s2, 5
    s_add_u32 s5, s5, s6
    s_lshl_b32 s5, s5, 1
    s_bfe_u32 s4, s2, 0x20003
    v_lshrrev_b32 v5, 4, v2
    v_and_b32 v13, 15, v2
    v_lshlrev_b32 v6, 4, v2
    """)

def w_loads(a, blk):
    a(f"""
    s_mul_i32 s6, s4, 3
    s_add_u32 s6, s6, s3
    s_mul_i32 s7, s6, 55296
    s_add_u32 s7, s7, {WS_WT + blk * WBLK}
    """)
    for f in range(54):
        a(f"buffer_load_dwordx4 {ar(4*f,4)}, v6, s[28:31], s7 offen offset:{(f%4)*1024}")
        if f % 4 == 3: a("s_add_u32 s7, s7, 4096")

def out_offsets(a):
    a("""
    s_mul_i32 s41, s6, 3
    s_add_u32 s40, s41, 1
    s_lshr_b32 s40, s40, 1
    s_lshl_b32 s40, s40, 10
    s_and_b32 s42, s6, 1
    s_add_u32 s43, s41, 2
    s_cmp_eq_u32 s42, 1
    s_cselect_b32 s41, s41, s43
    s_lshr_b32 s41, s41, 1
    s_lshl_b32 s41, s41, 10
    s_lshl_b32 s42, s42, 3
    s_add_u32 s41, s41, s42
    s_mul_i32 s43, s5, 18432
    """)

HF, CST, ST2, ST3 = 36864, 73728, 78848, 79360
LDS2 = 79872

def k2_path(a, gemm):
    X, CS, TMP = 16, 52, 196
    a(f"""
    v_lshrrev_b32 v3, 2, v2
    v_lshlrev_b32 v3, 12, v3
    v_and_b32 v4, 3, v2
    v_lshrrev_b32 v7, 5, v2
    v_lshlrev_b32 v7, 1, v7
    v_xor_b32 v4, v4, v7
    v_lshl_add_u32 v3, v4, 4, v3
    s_mul_i32 s6, s3, {9*16*4096}
    s_lshl_b32 s7, s5, 5
    s_add_u32 s6, s6, s7
    s_add_u32 s6, s6, {WS_X1T}
    s_mul_i32 s7, s3, 9216
    s_mov_b32 m0, s7
    s_lshl_b32 s32, s3, 10
    s_add_u32 s33, s32, {WS_MODF}
    s_add_u32 s32, s32, {CST}
    s_waitcnt lgkmcnt(0)
    """)
    for i in range(9):
        a("buffer_load_dwordx4 v3, s[28:31], s6 offen lds")
        a(f"s_add_u32 m0, m0, 1024\ns_add_u32 s6, s6, {16*4096}" if i < 8 else "s_mov_b32 m0, s32\ns_nop 0")
    a("buffer_load_dwordx4 v6, s[28:31], s33 offen lds")
    if gemm:
        w_loads(a, 16)
    else:
        a(f"s_mov_b32 m0, {CST + 4096}\ns_mov_b32 s33, {WS_MODF + 4096}\nbuffer_load_dwordx4 v6, s[28:31], s33 offen lds")
    a(f"""
    s_and_b32 s34, s3, 1
    s_lshr_b32 s35, s3, 1
    v_bfe_u32 v3, v2, 2, 2
    v_lshl_add_u32 v3, v5, 3, v3
    v_lshlrev_b32 v3, 6, v3
    v_bfe_u32 v4, v2, 1, 1
    s_lshl_b32 s36, s34, 1
    v_add_u32 v4, s36, v4
    v_and_b32 v7, 1, v5
    v_lshlrev_b32 v7, 1, v7
    v_xor_b32 v4, v4, v7
    v_lshl_add_u32 v3, v4, 4, v3
    v_and_b32 v4, 1, v2
    v_lshl_add_u32 v3, v4, 3, v3
    s_mul_i32 s36, s35, {9*2048}
    v_add_u32 v3, s36, v3
    s_mul_i32 s36, s35, {9*128}
    s_add_u32 s36, s36, {CST}
    v_lshl_add_u32 v4, v5, 5, s36
    s_lshl_b32 s36, s3, 7
    s_add_u32 s36, s36, {ST2}
    v_lshl_add_u32 v7, v13, 3, s36
    v_xor_b32 v8, 256, v7
    s_mul_i32 s36, s34, 18
    s_mul_i32 s37, s35, 9
    s_add_u32 s36, s36, s37
    s_lshl_b32 s36, s36, 10
    v_add_u32 v9, s36, v6
    s_mul_i32 s37, s5, 18432
    s_add_u32 s36, s36, s37
    s_add_u32 s37, s36, {WS_HBF}
    s_add_u32 s36, s36, {WS_X1F}
    s_mov_b64 s[24:25], s[28:29]
    s_cmp_eq_u32 s3, s4
    s_cselect_b32 s26, s30, 0
    s_mov_b32 s27, 0x20000
    s_mov_b32 s38, 0x3f803f80
    s_waitcnt vmcnt({54 if gemm else 0})
    s_barrier
    """)
    for u in range(9):
        for h in range(2):
            a(f"ds_read_b64_tr_b16 {vr(X+4*u+2*h,2)}, v3 offset:{u*2048 + h*256}")
    a("v_mov_b32 v10, 0\nv_mov_b32 v11, 0\nv_mov_b32 v14, 0\nv_mov_b32 v15, 0")
    def const_reads(u):
        return [f"ds_read_b128 {vr(CS+16*u+8*k+4*h,4)}, v4 offset:{k*2304 + u*128 + h*16}" for k in range(2) for h in range(2)]
    for u in range(9):
        for i in range(4):
            r = X + 4*u + i
            a(f"v_dot2c_f32_bf16 v{10 + 4*(i&1)}, s38, v{r}\nv_dot2c_f32_bf16 v{11 + 4*(i&1)}, v{r}, v{r}")
        if u >= 2:
            for x in const_reads(u - 2): a(x)
    def stats_finish(off):
        a("v_add_f32 v10, v10, v14\nv_add_f32 v11, v11, v15")
        group_allreduce(a, "v10", "v14"); group_allreduce(a, "v11", "v15")
        a(f"ds_write_b64 v7, v[10:11] offset:{off - ST2}")
    stats_finish(ST2)
    for u in range(9):
        a(f"buffer_store_dwordx4 {vr(X+4*u,4)}, v6, s[24:27], s36 offen offset:{(u%4)*1024}")
        if u % 4 == 3: a("s_add_u32 s36, s36, 4096")
    a("s_waitcnt lgkmcnt(0)\ns_barrier")
    a("ds_read_b64 v[14:15], v8")
    for u in (7, 8):
        for x in const_reads(u): a(x)
    a("v_add_f32 v10, v10, v14\nv_add_f32 v11, v11, v15")
    row_stats(a, "v10", "v11", "v14")
    a("v_rcp_f32 v11, v11\nv_mov_b32 v14, 0\nv_mov_b32 v15, 0\nv_mul_f32 v10, -v10, v11\nv_mov_b32 v12, 0\nv_mov_b32 v1, 0")
    for u in range(9):
        for i in range(4):
            r = X + 4*u + i; t = TMP + 2*(i & 1)
            S = CS + 16*u + 2*i
            a(f"v_lshlrev_b32 v{t}, 16, v{r}\nv_and_b32 v{t+1}, 0xffff0000, v{r}")
            a(f"v_pk_fma_f32 {vr(t,2)}, {vr(t,2)}, v[10:11], v[10:11] op_sel:[0,1,0] op_sel_hi:[1,1,0]")
            a(f"v_pk_fma_f32 {vr(t,2)}, {vr(t,2)}, {vr(S+8,2)}, {vr(S,2)}")
            a(f"v_cvt_pk_bf16_f32 v{r}, v{t}, v{t+1}")
        a(f"ds_write_b128 v9, {vr(X+4*u,4)} offset:{HF + u*1024}")
        a(f"buffer_store_dwordx4 {vr(X+4*u,4)}, v6, s[24:27], s37 offen offset:{(u%4)*1024}")
        if u % 4 == 3: a("s_add_u32 s37, s37, 4096")
        for i in range(4):
            r = X + 4*u + i
            a(f"v_dot2c_f32_bf16 {'v12' if i&1 else 'v14'}, s38, v{r}\nv_dot2c_f32_bf16 {'v1' if i&1 else 'v15'}, v{r}, v{r}")
    a("v_add_f32 v10, v12, v14\nv_add_f32 v11, v1, v15")
    group_allreduce(a, "v10", "v14"); group_allreduce(a, "v11", "v15")
    a(f"ds_write_b64 v7, v[10:11] offset:{ST3 - ST2}")
    if not gemm:
        a("s_waitcnt lgkmcnt(0)\ns_barrier\ns_endpgm")
        return
    out_offsets(a)
    a(f"""
    v_lshlrev_b32 v3, 5, v5
    s_lshr_b32 s44, s40, 3
    s_add_u32 s44, s44, {WS_CS1}
    s_lshr_b32 s45, s41, 10
    s_lshl_b32 s45, s45, 7
    s_lshl_b32 s42, s42, 1
    s_add_u32 s45, s45, s42
    s_add_u32 s45, s45, {WS_CS1}
    """)
    for h in range(2):
        a(f"buffer_load_dwordx4 {vr(200+12*h,4)}, v3, s[28:31], s44 offen offset:{2304*h}")
        a(f"buffer_load_dwordx4 {vr(204+12*h,4)}, v3, s[28:31], s44 offen offset:{2304*h+16}")
        a(f"buffer_load_dwordx4 {vr(208+12*h,4)}, v3, s[28:31], s45 offen offset:{2304*h}")
    a(f"v_lshlrev_b32 v7, 3, v13\nv_add_u32 v7, {ST3}, v7\nv_add_u32 v8, {HF}, v6\ns_add_u32 s40, s40, s43\ns_add_u32 s41, s41, s43\ns_add_u32 s40, s40, {WS_TF}\ns_add_u32 s41, s41, {WS_TF}")
    a("s_waitcnt lgkmcnt(0)\ns_barrier")
    B = 52; ACC = 16; GC = 224
    for w in range(4):
        a(f"ds_read_b64 {vr(40+2*w,2)}, v7 offset:{128*w}")
    rd = [f"ds_read_b128 {vr(B+8*ks+4*tt,4)}, v8 offset:{(18*tt+ks)*1024}" for ks in range(18) for tt in range(2)]
    for x in rd[:8]: a(x)
    for tt in range(2):
        m, sd = f"v{GC+4*tt}", f"v{GC+4*tt+1}"
        a(f"v_add_f32 {m}, v{40+2*tt}, v{44+2*tt}\nv_add_f32 {sd}, v{41+2*tt}, v{45+2*tt}")
        row_stats(a, m, sd, "v48")
        gelu_consts(a, m, sd, f"v{GC+4*tt+2}", f"v{GC+4*tt+3}")
    def mf(t):
        return [f"v_mfma_f32_16x16x32_bf16 {vr(ACC+8*t+4*tt,4)}, {ar(4*(18*t+ks),4)}, {vr(B+8*ks+4*tt,4)}, {vr(ACC+8*t+4*tt,4) if ks else '0'}"
                for ks in range(18) for tt in range(2)]
    def epi(t):
        o = []
        for tt in range(2):
            g = GC + 4*tt
            out = 232 + 4*tt + 2*t if t < 2 else 240 + 2*tt
            o += gelu_tile(ACC+8*t+4*tt, 200+4*t, g, g+1, g+2, g+3, 244 + 4*tt, out)
            if t == 1: o.append(f"buffer_store_dwordx4 {vr(232+4*tt,4)}, v6, s[28:31], s40 offen" + ("\ns_add_u32 s40, s40, 18432" if tt == 0 else ""))
            if t == 2: o.append(f"buffer_store_dwordx2 {vr(240+2*tt,2)}, v6, s[28:31], s41 offen" + ("\ns_add_u32 s41, s41, 18432" if tt == 0 else ""))
        return o
    adds = [f"v_add_f32 v{200+i}, v{200+i}, v{212+i}" for i in range(12)]
    for x in interleave(mf(0), rd[8:] + adds, 0, 34): a(x)
    for x in interleave(mf(1), epi(0), 4): a(x)
    for x in interleave(mf(2), epi(1), 4): a(x)
    for x in epi(2): a(x)
    a("s_endpgm")

def k2(a, name="k2_kernel"):
    a.kernel(name, 256, 256, LDS2, 252, agpr=216, sgpr=56)
    a("s_cmp_ge_u32 s2, 256\ns_cbranch_scc1 k2_exit")
    load_srds(a, [("ws", 28)])
    decode(a)
    a("s_cmp_eq_u32 s3, 3\ns_cbranch_scc1 k2_helper")
    k2_path(a, True)
    a("k2_helper:"); k2_path(a, False)
    a("k2_exit:\ns_endpgm")

LDS3 = 36864
def k3_path(a, gemm):
    a(f"""
    s_and_b32 s34, s3, 1
    s_lshr_b32 s35, s3, 1
    s_add_u32 s36, s5, s34
    s_lshl_b32 s36, s36, 4
    s_add_u32 s37, s35, 1
    v_add_u32 v3, s36, v13
    v_subrev_u32 v7, s37, v3
    v_add_u32 v8, s37, v3
    v_mov_b32 v9, {OOB}
    """)
    for v in ("v7", "v8"):
        a(f"""
        v_lshrrev_b32 v10, 4, {v}
        v_mul_u32_u24 v10, 18432, v10
        v_and_b32 v11, 15, {v}
        v_lshl_add_u32 v10, v11, 4, v10
        v_lshl_add_u32 v10, v5, 8, v10
        v_cmp_gt_u32 vcc, 2048, {v}
        v_cndmask_b32 {v}, v9, v10, vcc
        """)
    a(f"""
    v_cmp_gt_u32 vcc, 2, v5
    v_cndmask_b32 v9, v8, v7, vcc
    s_mul_i32 s36, s35, 9216
    s_mul_i32 s37, s34, 18432
    s_add_u32 s37, s37, s36
    s_add_u32 s36, s36, {WS_TF}
    s_mov_b32 m0, s37
    s_waitcnt lgkmcnt(0)
    """)
    for u in range(9):
        a(f"buffer_load_dwordx4 {'v7' if u < 4 else 'v9' if u == 4 else 'v8'}, s[28:31], s36 offen lds")
        if u < 8: a("s_add_u32 m0, m0, 1024\ns_add_u32 s36, s36, 1024")
    if not gemm:
        a("s_waitcnt vmcnt(0)\ns_barrier\ns_endpgm")
        return
    w_loads(a, 17)
    out_offsets(a)
    a(f"""
    s_add_u32 s40, s40, s43
    s_add_u32 s41, s41, s43
    s_add_u32 s44, s40, {WS_HBF}
    s_add_u32 s45, s41, {WS_HBF}
    s_add_u32 s40, s40, {WS_XBF}
    s_add_u32 s41, s41, {WS_XBF}
    s_mov_b32 s38, 0x3f803f80
    s_waitcnt vmcnt(54)
    s_barrier
    """)
    B = 52; ACC = 16; HB = 200
    for tt in range(2):
        a(f"buffer_load_dwordx4 {vr(HB+4*tt,4)}, v6, s[28:31], s44 offen")
        a(f"buffer_load_dwordx2 {vr(HB+8+2*tt,2)}, v6, s[28:31], s45 offen")
        if tt == 0: a("s_add_u32 s44, s44, 18432\ns_add_u32 s45, s45, 18432")
    rd = [f"ds_read_b128 {vr(B+8*ks+4*tt,4)}, v6 offset:{(18*tt+ks)*1024}" for ks in range(18) for tt in range(2)]
    for x in rd[:8]: a(x)
    for i in range(4): a(f"v_mov_b32 v{40+i}, 0")
    def mf(t):
        return [f"v_mfma_f32_16x16x32_bf16 {vr(ACC+8*t+4*tt,4)}, {ar(4*(18*t+ks),4)}, {vr(B+8*ks+4*tt,4)}, {vr(ACC+8*t+4*tt,4) if ks else '0'}"
                for ks in range(18) for tt in range(2)]
    def epi(t):
        o = []
        for tt in range(2):
            hb = HB + 4*tt + 2*t if t < 2 else HB + 8 + 2*tt
            acc = ACC + 8*t + 4*tt; tm = 216 + 4*tt
            for i in range(2):
                o += [f"v_lshlrev_b32 v{tm+2*i}, 16, v{hb+i}", f"v_and_b32 v{tm+2*i+1}, 0xffff0000, v{hb+i}"]
            o += [f"v_add_f32 v{tm+i}, v{tm+i}, v{acc+i}" for i in range(4)]
            o += [f"v_cvt_pk_bf16_f32 v{hb+i}, v{tm+2*i}, v{tm+2*i+1}" for i in range(2)]
            if t == 1: o.append(f"buffer_store_dwordx4 {vr(HB+4*tt,4)}, v6, s[28:31], s40 offen" + ("\ns_add_u32 s40, s40, 18432" if tt == 0 else ""))
            if t == 2: o.append(f"buffer_store_dwordx2 {vr(HB+8+2*tt,2)}, v6, s[28:31], s41 offen" + ("\ns_add_u32 s41, s41, 18432" if tt == 0 else ""))
            for i in range(2):
                o += [f"v_dot2c_f32_bf16 v{40+2*tt}, s38, v{hb+i}", f"v_dot2c_f32_bf16 v{41+2*tt}, v{hb+i}, v{hb+i}"]
        return o
    for x in interleave(mf(0), rd[8:], 0, 28): a(x)
    for x in interleave(mf(1), epi(0), 6): a(x)
    for x in interleave(mf(2), epi(1), 6): a(x)
    a(f"""
    v_mul_u32_u24 v3, 96, v13
    v_and_b32 v4, 1, v5
    v_mul_u32_u24 v4, {16*96}, v4
    v_add_u32 v3, v3, v4
    v_mov_b32 v4, {OOB}
    v_cmp_gt_u32 vcc, 2, v5
    v_cndmask_b32 v3, v4, v3, vcc
    s_mul_i32 s44, s5, {16*96}
    s_lshl_b32 s45, s6, 3
    s_add_u32 s44, s44, s45
    s_add_u32 s44, s44, {WS_ST4}
    """)
    for x in epi(2): a(x)
    for i in range(4): group_allreduce(a, f"v{40+i}", f"v{44+i}")
    a("""
    v_cmp_eq_u32 vcc, 1, v5
    v_cndmask_b32 v40, v40, v42, vcc
    v_cndmask_b32 v41, v41, v43, vcc
    buffer_store_dwordx2 v[40:41], v3, s[28:31], s44 offen
    s_endpgm
    """)

def k3(a, name="k3_kernel"):
    a.kernel(name, 256, 256, LDS3, 224, agpr=216, sgpr=56)
    a("s_cmp_ge_u32 s2, 256\ns_cbranch_scc1 k3_exit")
    load_srds(a, [("ws", 28)])
    decode(a)
    a("s_cmp_eq_u32 s3, 3\ns_cbranch_scc1 k3_helper")
    k3_path(a, True)
    a("k3_helper:"); k3_path(a, False)
    a("k3_exit:\ns_endpgm")

if __name__ == "__main__":
    a = Asm(); k2(a); k3(a); open("k23_tmp.s", "w").write(a.text()); print(a.stats)
```

```python
from common import *
LDS4 = 147456 + 8192
CSO = 147456
HOFF = 73728

def k4(a, name="k4_kernel", DP=24, RING=30):
    ACC = 0 + 8
    BF = 152
    GC = 184
    CS = 200
    TM = 224
    PK = 232
    AG2 = 4 * RING
    a.kernel(name, 256, 256, LDS4, 240, agpr=AG2 + 96, sgpr=56)
    a("s_cmp_ge_u32 s2, 256\ns_cbranch_scc1 k4_exit")
    load_srds(a, [("ws", 28)])
    a(f"""
    v_lshrrev_b32 v1, 6, v0
    v_and_b32 v2, 63, v0
    v_readfirstlane_b32 s3, v1
    s_and_b32 s4, s2, 3
    s_lshl_b32 s4, s4, 1
    s_bfe_u32 s6, s2, 0x10003
    s_add_u32 s4, s4, s6
    s_bfe_u32 s5, s2, 0x10002
    s_lshl_b32 s5, s5, 4
    s_lshr_b32 s6, s2, 4
    s_add_u32 s5, s5, s6
    v_lshlrev_b32 v6, 4, v2
    s_lshl_b32 s6, s5, 2
    s_add_u32 s6, s6, s3
    s_mul_i32 s6, s6, 18432
    s_add_u32 s6, s6, {WS_XBF}
    s_mul_i32 s7, s3, 18432
    s_mov_b32 m0, s7
    s_mul_i32 s32, s4, {WBLK}
    s_mul_i32 s33, s3, 165888
    s_add_u32 s33, s33, s32
    s_add_u32 s33, s33, {WS_WT + 8*WBLK}
    s_mul_i32 s34, s3, 55296
    s_add_u32 s32, s32, s34
    s_add_u32 s32, s32, {WS_WT}
    v_lshrrev_b32 v5, 4, v2
    v_and_b32 v7, 15, v2
    v_mul_u32_u24 v3, 96, v7
    v_mul_u32_u24 v4, 24, v5
    v_add_u32 v3, v3, v4
    s_mul_i32 s34, s5, {64*96}
    s_add_u32 s34, s34, {WS_ST4}
    s_waitcnt lgkmcnt(0)
    """)
    for ks in range(18):
        a("buffer_load_dwordx4 v6, s[28:31], s6 offen lds")
        if ks < 17: a("s_add_u32 m0, m0, 1024\ns_add_u32 s6, s6, 1024")
    a(f"""
    s_lshl_b32 s6, s3, 10
    s_add_u32 m0, s6, {CSO}
    s_mul_i32 s7, s4, 2304
    s_add_u32 s6, s6, s7
    s_add_u32 s6, s6, {WS_CS3}
    buffer_load_dwordx4 v6, s[28:31], s6 offen lds
    s_add_u32 m0, m0, 4096
    s_add_u32 s6, s6, {4608*4}
    buffer_load_dwordx4 v6, s[28:31], s6 offen lds
    """)
    T = ACC + 48
    for tt in range(4):
        a(f"buffer_load_dwordx4 {vr(T+8*tt,4)}, v3, s[28:31], s34 offen")
        a(f"buffer_load_dwordx2 {vr(T+8*tt+4,2)}, v3, s[28:31], s34 offen offset:16")
        if tt < 3: a(f"s_add_u32 s34, s34, {16*96}")
    def wload(f):
        o = []
        sreg = "s32" if f < 162 else "s33"
        k = f % 54 if f < 162 else f - 162
        o.append(f"buffer_load_dwordx4 {ar(4*(f % RING),4)}, v6, s[28:31], {sreg} offen offset:{(k%4)*1024}")
        if f < 162 and k == 53: o.append(f"s_add_u32 s32, s32, {221184 - 13*4096}")
        elif k % 4 == 3: o.append(f"s_add_u32 {sreg}, {sreg}, 4096")
        return "\n".join(o)
    for f in range(DP): a(wload(f))
    a(f"""
    s_mul_i32 s35, s3, 3
    s_add_u32 s36, s35, 1
    s_lshr_b32 s36, s36, 1
    s_and_b32 s38, s3, 1
    s_add_u32 s37, s35, 2
    s_cmp_eq_u32 s38, 1
    s_cselect_b32 s37, s35, s37
    s_lshr_b32 s37, s37, 1
    s_lshl_b32 s39, s36, 12
    s_add_u32 s39, s39, {HOFF}
    v_add_u32 v0, s39, v6
    s_lshl_b32 s39, s37, 12
    s_lshl_b32 s40, s38, 3
    s_add_u32 s39, s39, s40
    s_add_u32 s39, s39, {HOFF}
    v_add_u32 v1, s39, v6
    s_lshl_b32 s36, s36, 7
    s_add_u32 s36, s36, {CSO}
    s_lshl_b32 s37, s37, 7
    s_lshl_b32 s40, s38, 4
    s_add_u32 s37, s37, s40
    s_add_u32 s37, s37, {CSO}
    v_lshl_add_u32 v4, v5, 5, s36
    v_lshl_add_u32 v7, v5, 5, s37
    v_add_u32 v2, 36864, v6
    v_add_u32 v238, {HOFF}, v6
    v_add_u32 v239, {HOFF + 36864}, v6
    s_mul_i32 s41, s3, 9
    s_add_u32 s42, s41, 1
    s_lshr_b32 s42, s42, 1
    s_lshl_b32 s42, s42, 10
    s_add_u32 s43, s41, 8
    s_cmp_eq_u32 s38, 1
    s_cselect_b32 s43, s41, s43
    s_lshr_b32 s43, s43, 1
    s_lshl_b32 s43, s43, 10
    s_lshl_b32 s40, s38, 3
    s_add_u32 s43, s43, s40
    s_mul_i32 s44, s4, {ACT}
    s_mul_i32 s45, s5, {4*18432}
    s_add_u32 s44, s44, s45
    s_add_u32 s44, s44, {WS_PART}
    s_add_u32 s42, s42, s44
    s_add_u32 s43, s43, s44
    """)
    for tt in range(1, 4):
        a(f"s_add_u32 s{47+tt}, s42, {18432*tt}\ns_add_u32 s{50+tt}, s43, {18432*tt}")
    pair_s = ["s42", "s48", "s49", "s50"]; single_s = ["s43", "s51", "s52", "s53"]
    def cs_loads(p):
        o = []
        for h in range(2):
            o += [f"ds_read_b128 {vr(CS+12*h,4)}, v4 offset:{4096*h + 768*p}",
                  f"ds_read_b128 {vr(CS+12*h+4,4)}, v4 offset:{4096*h + 768*p + 16}",
                  f"ds_read_b128 {vr(CS+12*h+8,4)}, v7 offset:{4096*h + 768*p}"]
        return o
    cs_add = [f"v_add_f32 v{CS+i}, v{CS+i}, v{CS+12+i}" for i in range(12)]
    for tt in range(4):
        b = T + 8 * tt; m, sd = f"v{GC+4*tt}", f"v{GC+4*tt+1}"
        a(f"v_add_f32 {m}, v{b}, v{b+2}\nv_add_f32 {sd}, v{b+1}, v{b+3}\nv_add_f32 {m}, {m}, v{b+4}\nv_add_f32 {sd}, {sd}, v{b+5}")
        group_allreduce(a, m, f"v{b}"); group_allreduce(a, sd, f"v{b+1}")
        row_stats(a, m, sd, f"v{b}")
        gelu_consts(a, m, sd, f"v{GC+4*tt+2}", f"v{GC+4*tt+3}")
    a("s_barrier")
    steps = []
    for p in range(3):
        for ks in range(18): steps.append((54*p + 3*ks, 3, [(18*tt + ks) * 1024 for tt in range(4)]))
    for ks in range(18): steps.append((162 + 9*ks, 9, [HOFF + (4*ks + tt) * 1024 for tt in range(4)]))
    def bread(s):
        o = []
        for tt, off in enumerate(steps[s][2]):
            q = off // 36864
            o.append(f"ds_read_b128 {vr(BF+16*(s&1)+4*tt,4)}, {['v6','v2','v238','v239'][q]} offset:{off - q*36864}")
        return o
    NG = 324
    pre = [[] for _ in range(4 * NG)]
    post = [[] for _ in range(4 * NG)]
    cost = [0] * (4 * NG)
    def place(m, txt, c=4):
        post[m].append(txt); cost[m] += c
    for f in range(NG - DP): place(4 * f, wload(f + DP))
    for s in range(len(steps) - 1):
        g0, n, _ = steps[s]
        for tt, x in enumerate(bread(s + 1)):
            place(4 * g0 + ([1, 2, 3, 5][tt] if n == 3 else 6 * tt + 7), x)
    starts = {g0 for g0, _, _ in steps}
    for f in range(0, NG, 3):
        left = min(NG, f + DP) - (f + 3)
        w = f"s_waitcnt vmcnt({left})" if f < 318 else "s_waitcnt"
        if f in starts: w += " lgkmcnt(0)"
        if w != "s_waitcnt": pre[4 * f].append(w)
    for gb in (159, 207, 261):
        pre[4 * gb].append("s_barrier")
    for p in range(3):
        for i, x in enumerate(cs_loads(p)): place(4 * ([48, 118, 187][p] + i) + 2, x)
    def gelu_pass(p):
        o = list(cs_add)
        k = 0
        for tt in range(4):
            g = GC + 4 * tt
            for t in range(3):
                o += gelu_tile(ACC + 48*p + 16*t + 4*tt, CS + 4*t, g, g+1, g+2, g+3, TM + 4*(k & 1), PK + 2*t); k += 1
                if t == 1: o.append(f"ds_write_b128 v0, {vr(PK,4)} offset:{p*6*4096 + tt*1024}")
                if t == 2: o.append(f"ds_write_b64 v1, {vr(PK+4,2)} offset:{p*6*4096 + tt*1024}")
        return o
    wt = lambda x: 8 if x.startswith(("v_exp", "v_rcp")) else 4
    for p, (lo, hi) in enumerate(((55, 117), (125, 186), (194, 260))):
        st = gelu_pass(p)
        slots = list(range(4 * lo, 4 * hi))
        total = sum(wt(x) for x in st) + sum(cost[m] for m in slots)
        per = total / len(slots)
        acc = 0.0; i = 0
        for m in slots:
            acc += per - cost[m]
            while i < len(st) and (acc >= wt(st[i]) / 2 or m == slots[-1]):
                acc -= wt(st[i]); place(m, st[i], wt(st[i])); i += 1
    move_at = {3: 7, 4: 8, 5: 9, 6: 13, 7: 14, 8: 15}
    def acc2(t, tt, ks):
        if t < 3 or ks >= move_at[t]: return vr(ACC + 16*t + 4*tt, 4)
        return ar(AG2 + 16*(t - 3) + 4*tt, 4)
    for t, ks in move_at.items():
        g = 162 + 9 * ks + t
        mv = [f"v_accvgpr_read_b32 v{ACC + 16*t + i}, a{AG2 + 16*(t-3) + i}" for i in range(16)]
        for i, x in enumerate(mv): place(4 * (g - 6) + i + (i // 4), x)
    def epi(t):
        o = []
        for tt in range(4):
            b = ACC + 16*t + 4*tt
            if t < 8:
                d = ACC + 16*(t & ~1) + 4*tt
                o += [f"v_cvt_pk_bf16_f32 v{d + 2*(t&1) + i}, v{b+2*i}, v{b+2*i+1}" for i in range(2)]
                if t & 1: o.append(f"buffer_store_dwordx4 {vr(d,4)}, v6, s[28:31], {pair_s[tt]} offen offset:{(t>>1)*1024}")
            else:
                o += [f"v_cvt_pk_bf16_f32 v{b+i}, v{b+2*i}, v{b+2*i+1}" for i in range(2)]
                o.append(f"buffer_store_dwordx2 {vr(b,2)}, v6, s[28:31], {single_s[tt]} offen")
        return o
    for t in range(7):
        e = epi(t)
        for i, x in enumerate(e): place(4 * (315 + t + 2) + i * 4 // len(e), x)
    for x in bread(0): a(x)
    for s, (g0, n, _) in enumerate(steps):
        for j in range(n):
            f = g0 + j
            for tt in range(4):
                m = 4 * f + tt
                for x in pre[m]: a(x)
                if s < 54:
                    d = vr(ACC + 48*(s // 18) + 16*j + 4*tt, 4); first = s % 18 == 0
                else:
                    d = acc2(j, tt, s - 54); first = s == 54
                a(f"v_mfma_f32_16x16x32_bf16 {d}, {ar(4*(f % RING),4)}, {vr(BF+16*(s&1)+4*tt,4)}, {'0' if first else d}")
                for x in post[m]: a(x)
    for t in (7, 8):
        for x in epi(t): a(x)
    a("k4_exit:\ns_endpgm")

def k5(a, name="k5_kernel"):
    a.kernel(name, 576, 256, 0, 80, sgpr=48)
    a("s_cmp_ge_u32 s2, 576\ns_cbranch_scc1 k5_exit")
    load_srds(a, [("ws", 28), ("out", 8)])
    a(f"""
    v_lshrrev_b32 v1, 6, v0
    v_and_b32 v2, 63, v0
    v_readfirstlane_b32 s3, v1
    s_lshl_b32 s4, s2, 2
    s_add_u32 s4, s4, s3
    s_mul_hi_u32 s5, s4, {(2**32 + 17)//18}
    s_mul_i32 s6, s5, 18
    s_sub_u32 s6, s4, s6
    s_lshl_b32 s4, s4, 10
    v_lshlrev_b32 v6, 4, v2
    v_lshrrev_b32 v5, 4, v2
    v_lshlrev_b32 v3, 5, v5
    s_lshl_b32 s7, s6, 7
    s_add_u32 s7, s7, {WS_MODF + 2*2304}
    s_add_u32 s32, s4, {WS_PART}
    s_add_u32 s33, s4, {WS_XBF}
    s_add_u32 s34, s4, {WS_X1F}
    s_waitcnt lgkmcnt(0)
    """)
    for c in range(8):
        a(f"buffer_load_dwordx4 {vr(8+4*c,4)}, v6, s[28:31], s32 offen")
        if c < 7: a(f"s_add_u32 s32, s32, {ACT}")
    a(f"""
    buffer_load_dwordx4 v[40:43], v6, s[28:31], s33 offen
    buffer_load_dwordx4 v[44:47], v6, s[28:31], s34 offen
    buffer_load_dwordx4 v[48:51], v3, s[28:31], s7 offen
    buffer_load_dwordx4 v[52:55], v3, s[28:31], s7 offen offset:16
    v_and_b32 v7, 15, v2
    v_mul_u32_u24 v7, 1152, v7
    v_lshl_add_u32 v7, v5, 4, v7
    s_mul_i32 s5, s5, {16*1152}
    s_lshl_b32 s6, s6, 6
    s_add_u32 s5, s5, s6
    """)
    S = 56
    def unpack(d, r): a(f"v_lshlrev_b32 v{d}, 16, v{r}\nv_and_b32 v{d+1}, 0xffff0000, v{r}")
    for c in range(8):
        for i in range(4):
            if c == 0: unpack(S + 2*i, 8 + i)
            else:
                unpack(64 + 2*i, 8 + 4*c + i)
                a(f"v_pk_add_f32 {vr(S+2*i,2)}, {vr(S+2*i,2)}, {vr(64+2*i,2)}")
    def rnd(i):
        a(f"v_cvt_pk_bf16_f32 v72, v{S+2*i}, v{S+2*i+1}"); unpack(S + 2*i, 72)
    for i in range(4):
        rnd(i)
        unpack(64, 40 + i)
        a(f"v_pk_add_f32 {vr(S+2*i,2)}, {vr(S+2*i,2)}, v[64:65]")
        rnd(i)
        a(f"v_pk_mul_f32 {vr(S+2*i,2)}, {vr(S+2*i,2)}, {vr(48+2*i,2)}")
        rnd(i)
        unpack(64, 44 + i)
        a(f"v_pk_add_f32 {vr(S+2*i,2)}, {vr(S+2*i,2)}, v[64:65]")
        a(f"v_cvt_pk_bf16_f32 v{8+i}, v{S+2*i}, v{S+2*i+1}")
    a("buffer_store_dwordx4 v[8:11], v7, s[8:11], s5 offen\nk5_exit:\ns_endpgm")

if __name__ == "__main__":
    a = Asm(); k4(a); k5(a); open("k45_tmp.s", "w").write(a.text()); print(a.stats)
```

```python
import sys
from common import *
import k0, k1, k23, k45
NAME = "adaLN_cond__ssm_conv_s4d__mixer_s_mlp__prompt"
def header():
    lines = []
    for l in open(f"cdna_kernels/{NAME}.s.ref"):
        if l.startswith("; Override") or not l.startswith(";"): break
        lines.append(l)
    return "".join(lines)
def build(path):
    a = Asm()
    k0.k0(a); k1.k1(a); k23.k2(a); k23.k3(a); k45.k4(a); k45.k5(a)
    open(path, "w").write(a.text(header()))
    return a
if __name__ == "__main__":
    p = sys.argv[1] if len(sys.argv) > 1 else f"cdna_kernels/{NAME}.s"
    print(build(p).stats)
```

```python
from dsl import *
import os
OPT = dict(x.split('=') for x in os.environ.get('OPT', '').split(',') if x)
def opt(k, d): return type(d)(OPT.get(k, d))
L, D, N, F = 2048, 576, 128, 4608
NTP = 18432 + opt('ntpad', 128)
X1B = 36864 + opt('x1pad', 128)
WT_SC = opt('wt', ' sc1') if opt('wt', ' sc1') != '0' else ''
ACT = L * D * 2
WS_MODP = 0x000000
WS_MODF = 0x010000
WS_KSC  = 0x014000
WS_CS1  = 0x015000
WS_CS3  = 0x018000
WS_CNT  = 0x030000
WS_UT   = 0x040000
UT_PITCH = 1344
WS_NT   = 0x100000
WS_XT   = WS_NT + 0x260000
WS_X1T  = WS_XT + 0x260000
WS_X1F  = WS_X1T + 0x260000
WS_HBF  = WS_X1F + ACT
WS_TF   = WS_HBF + ACT
WS_XBF  = WS_TF + ACT
WS_ST4  = WS_XBF + ACT
WS_WT   = 0x1200000
WBLK = 36 * 18 * 1024
WS_PART = 0x1E00000
WS_END  = WS_PART + 8 * ACT
WS_DBG  = 0x3100000
assert WS_ST4 + 2048 * 96 <= WS_WT and WS_WT + 18 * WBLK <= WS_PART
ARG = dict(u=0, lar=8, aim=16, cre=24, cim=32, ldt=40, dsk=48, bx=56, w1=64, w2=72, w3=80, w4=88, c=96, wmod=104,
           out=112, dbg=120, ws=128)
SIZE = dict(u=ACT, lar=D*N*2, aim=D*N*2, cre=D*N*2, cim=D*N*2, ldt=D*2, dsk=D*2, w1=D*D*2, w2=D*D*2, w3=D*F*2,
            w4=D*F*2, c=D*2, wmod=D*6*D*2, out=ACT, ws=WS_DBG + 0x200000)
LOG2E = 1.4426950408889634
OOB = 0x7ffffff0

def load_srds(a, specs):
    for name, s in specs:
        a(f"s_load_dwordx2 s[{s}:{s+1}], s[0:1], {ARG[name]}")
    for name, s in specs:
        a(f"s_mov_b32 s{s+2}, {SIZE[name]}\ns_mov_b32 s{s+3}, 0x20000")

def bf16_round(a, dst, src):
    a(f"v_cvt_pk_bf16_f32 {dst}, {src}, {src}\nv_and_b32 {dst}, 0xffff0000, {dst}")

def row_allreduce_add(a, v):
    for k in (8, 4, 2, 1):
        a(f"v_add_f32_dpp {v}, {v}, {v} row_ror:{k} row_mask:0xf bank_mask:0xf bound_ctrl:1")

def group_allreduce(a, v, t, op="v_add_f32"):
    a(f"v_mov_b32 {t}, {v}\nv_permlane16_swap_b32 {v}, {t}\n{op} {v}, {v}, {t}")
    a(f"v_mov_b32 {t}, {v}\nv_permlane32_swap_b32 {v}, {t}\n{op} {v}, {v}, {t}")

GELU_K = -2.0 * 0.7978845608028654 * LOG2E
GELU_C = 0.044715

def tile_of(n, w, a):
    return n * w + ((a + 1) % n if w & 1 else a)

def row_stats(a, s1, s2, t):
    a(f"v_mul_f32 {s1}, {fbits(1/576)}, {s1}\nv_mul_f32 {s2}, {fbits(1/576)}, {s2}\nv_fma_f32 {s2}, -{s1}, {s1}, {s2}\nv_max_f32 {s2}, 0, {s2}")
    bf16_round(a, s1, s1)
    bf16_round(a, s2, s2)
    a(f"v_add_f32 {s2}, {fbits(1e-5)}, {s2}")
    bf16_round(a, s2, s2)
    a(f"v_sqrt_f32 {s2}, {s2}")
    bf16_round(a, s2, s2)

def gelu_consts(a, m, sd, a0, a1):
    a(f"""v_rcp_f32 {a0}, {sd}
    v_sub_f32 {m}, 0, {m}
    v_mul_f32 {a1}, {a0}, {a0}
    v_mul_f32 {a0}, {fbits(GELU_K)}, {a0}
    v_mul_f32 {a1}, {fbits(GELU_C)}, {a1}
    v_mul_f32 {a1}, {a1}, {a0}""")

def gelu_tile(acc, cs, nm, sd, a0, a1, t, out):
    r = range(4)
    o = [f"v_fmac_f32 v{acc+i}, v{nm}, v{cs+i}" for i in r]
    o += [f"v_mul_f32 v{t+i}, v{acc+i}, v{acc+i}" for i in r]
    o += [f"v_fma_f32 v{t+i}, v{t+i}, v{a1}, v{a0}" for i in r]
    o += [f"v_mul_f32 v{t+i}, v{t+i}, v{acc+i}" for i in r]
    o += [f"v_exp_f32 v{t+i}, v{t+i}" for i in r]
    o += [f"v_fma_f32 v{t+i}, v{t+i}, v{sd}, v{sd}" for i in r]
    o += [f"v_rcp_f32 v{t+i}, v{t+i}" for i in r]
    o += [f"v_mul_f32 v{t+i}, v{t+i}, v{acc+i}" for i in r]
    o += [f"v_cvt_pk_bf16_f32 v{out+i}, v{t+2*i}, v{t+2*i+1}" for i in range(2)]
    return o
```

```python
import re

TRANS = ("v_exp_f32", "v_log_f32", "v_rcp_f32", "v_rsq_f32", "v_sqrt_f32", "v_sin_f32", "v_cos_f32",
         "v_rcp_iflag_f32", "v_exp_f16", "v_rcp_f16")
RMW = ("v_fmac_", "v_dot2c_", "v_fma_mixlo", "v_fma_mixhi", "v_writelane", "v_pk_fmac")
_REG = re.compile(r"^(-|\|)*([vas])(\d+|\[(\d+):(\d+)\])\|?$")

def regs_of(tok):
    tok = tok.strip()
    tok = re.sub(r"^abs\((.*)\)$", r"\1", tok.lstrip("-"))
    if tok in ("vcc", "exec"):
        return {tok}
    if tok in ("vcc_lo", "vcc_hi"):
        return {"vcc"}
    if tok in ("exec_lo", "exec_hi"):
        return {"exec"}
    if tok == "m0":
        return {"m0"}
    m = _REG.match(tok)
    if not m:
        return set()
    k = m.group(2)
    if m.group(4) is not None:
        return {f"{k}{i}" for i in range(int(m.group(4)), int(m.group(5)) + 1)}
    return {f"{k}{m.group(3)}"}

class Ins:
    def __init__(self, text):
        self.text = text
        body = text.split(";")[0].strip()
        self.label = body[:-1] if body.endswith(":") else None
        self.op = "" if self.label or not body else body.split()[0]
        rest = body[len(self.op):].strip() if self.op else ""
        toks = [t.strip() for t in rest.split(",")] if rest else []
        mods = ""
        if toks:
            parts = toks[-1].split(None, 1)
            toks[-1] = parts[0]
            mods = parts[1] if len(parts) > 1 else ""
        self.toks, self.mods = toks, mods
        op = self.op
        self.dst, self.src = set(), set()
        self.kind = "other"
        R = [regs_of(t) for t in toks]
        U = lambda l: set().union(*l) if l else set()
        self.mfma = op.startswith("v_mfma")
        if self.mfma:
            self.kind = "mfma"
            self.dst = R[0]; self.A = R[1]; self.B = R[2]; self.C = R[3]
            self.src = R[1] | R[2] | R[3]
            self.passes = 8 if "32x32" in op else 4
        elif op.startswith("v_"):
            self.kind = "valu"
            nd = 1
            if "_co_" in op or op.startswith("v_mad_u64") or op.startswith("v_div_scale"):
                nd = 2
            if "swap" in op:
                self.dst = R[0] | R[1]; self.src = R[0] | R[1]
            else:
                self.dst = U(R[:nd]); self.src = U(R[nd:])
            if op.startswith(RMW) or ("dpp" in op and "bound_ctrl" not in mods) or "UNUSED_PRESERVE" in mods:
                self.src |= R[0]
            if op.startswith("v_cndmask") and len(toks) == 3:
                self.src |= {"vcc"}
        elif op.startswith(("buffer_", "global_")):
            self.kind = "vmem"
            lds = " lds" in " " + mods
            self.lds_dma = lds or "load_lds" in op
            if op in ("buffer_wbl2", "buffer_inv"):
                pass
            elif "load" in op and not self.lds_dma:
                self.dst = R[0]; self.src = U(R[1:])
                if "d16" in op: self.src |= R[0]
            elif "atomic" in op and "sc0" in mods and op.startswith("global_"):
                self.dst = R[0]; self.src = U(R[1:])
            elif "atomic" in op and "sc0" in mods:
                self.dst = R[0]; self.src = U(R)
            else:
                self.src = U(R)
            if self.lds_dma: self.src |= {"m0"}
            self.wide_store = ("store" in op) and ("x3" in op or "x4" in op)
            if self.wide_store:
                self.data = R[1] if op.startswith("global_") else R[0]
        elif op.startswith("ds_"):
            self.kind = "ds"
            if op.startswith(("ds_read", "ds_bpermute", "ds_permute", "ds_swizzle")) or "_rtn" in op:
                self.dst = R[0]; self.src = U(R[1:])
                if "d16" in op: self.src |= R[0]
            else:
                self.src = U(R)
        elif op.startswith(("s_load", "s_buffer_load", "s_memtime", "s_memrealtime", "s_atomic")):
            self.kind = "smem"
            self.dst = R[0]; self.src = U(R[1:])
        elif op.startswith("s_"):
            self.kind = "salu"
            if op.startswith(("s_cmp", "s_cbranch", "s_branch", "s_waitcnt", "s_nop", "s_barrier", "s_endpgm",
                              "s_setprio", "s_sleep", "s_bitcmp")):
                self.src = U(R)
            else:
                self.dst = R[0] if R else set(); self.src = U(R[1:])
                if "saveexec" in op: self.dst |= {"exec"}; self.src |= {"exec"}
                if op.startswith(("s_addk", "s_mulk", "s_cmov")): self.src |= R[0]
        self.trans = op.split("_e32")[0].split("_e64")[0] in TRANS
        self.dpp = "dpp" in op or "row_" in mods or "quad_perm" in mods
        self.perml = op.startswith("v_permlane")
        self.rdlane = op.startswith(("v_readlane", "v_readfirstlane"))
        self.bitmove = op.startswith("v_fma_mixhi") or ("dst_sel" in mods and "dst_sel:DWORD" not in mods)
        self.states = 1
        if op == "s_nop":
            self.states = int(toks[0], 0) + 1

def vec(s): return {r for r in s if r[0] in "va" and r != "vcc"}
def sca(s): return {r for r in s if r[0] == "s" or r in ("vcc",)}

def need_states(p, c):
    n = 0
    if p.kind == "valu":
        w = vec(p.dst); ws = sca(p.dst)
        if c.mfma and w & c.src: n = max(n, 2)
        if c.kind == "valu":
            if p.trans and not c.trans and w & c.src: n = max(n, 1)
            if p.bitmove and w & (c.src | c.dst): n = max(n, 1)
            if c.rdlane and w & c.src: n = max(n, 1)
            if (c.dpp or c.perml) and w & c.src: n = max(n, 2)
            if ws & c.src: n = max(n, 4 if c.op.startswith(("v_readlane", "v_writelane")) else 2)
        if p.op.startswith("v_dot") and c.kind in ("valu", "mfma", "vmem", "ds") and w & (c.src | c.dst):
            same_acc = c.op == p.op and not (w & set().union(*[regs_of(t) for t in c.toks[1:3]]))
            if not same_acc: n = max(n, 3)
        if c.kind == "vmem" and ws & c.src: n = max(n, 5)
        if c.kind in ("salu", "smem") and ws & c.src: n = max(n, 1)
    if p.mfma:
        big = p.passes == 8
        if c.mfma:
            if p.dst & (c.A | c.B): n = max(n, 12 if big else 8)
            if p.dst & c.C and not (p.dst == c.C and p.passes == c.passes): n = max(n, 10 if big else 6)
            if p.dst & c.dst and not (p.dst & c.C): n = max(n, 10 if big else 6)
        elif c.kind in ("valu", "vmem", "ds"):
            if p.dst & (c.src | c.dst): n = max(n, 12 if big else 8)
            if c.kind == "valu" and p.C & c.dst: n = max(n, 7 if big else 3)
    if p.kind == "vmem" and getattr(p, "wide_store", False):
        if p.data & c.dst: n = max(n, 2 if c.kind == "valu" else 1)
    if p.kind == "salu" and "m0" in p.dst and "m0" in c.src and c.kind in ("vmem", "valu", "ds"):
        n = max(n, 1)
    return n

class State:
    def __init__(self):
        self.vm = []
        self.tags = []
        self.lg = []
        self.hists = [[]]
    def copy(self):
        s = State(); s.vm = list(self.vm); s.tags = list(self.tags); s.lg = list(self.lg); s.hists = [list(h) for h in self.hists]; return s
    def push(self, ins):
        for h in self.hists:
            h.append(ins)
            if len(h) > 48: del h[:-24]
        if len(self.hists) > 1 and all(h[-22:] == self.hists[0][-22:] for h in self.hists):
            self.hists = self.hists[:1]

def finalize(lines, stats=None):
    out = []
    st = State()
    saved = {}
    entry = {}
    dead = False
    nnop = nwait = 0
    def apply_wait(ins):
        t = ins.text
        m = re.search(r"vmcnt\((\d+)\)", t)
        if m:
            n = int(m.group(1)); k = max(0, len(st.vm) - n); st.vm = st.vm[k:]; st.tags = st.tags[k:]
        m = re.search(r"lgkmcnt\((\d+)\)", t)
        if m:
            n = int(m.group(1))
            if n == 0: st.lg = []
            elif not any(x[1] for x in st.lg): st.lg = st.lg[max(0, len(st.lg) - n):]
    for text in lines:
        s = text.strip()
        if s.startswith("@wait_vm"):
            parts = s.split(None, 2)
            idx = [i for i, t in enumerate(st.tags) if t == parts[1]]
            w = (f" vmcnt({min(63, len(st.vm) - 1 - idx[-1])})" if idx else "") + (" " + parts[2] if len(parts) > 2 else "")
            if not w: continue
            s = "s_waitcnt" + w; text = "    " + s
        tag = None
        if ";@" in s:
            s, tag = s.split(";@"); s = s.strip(); text = "    " + s
        if not s or s.startswith((";", ".")) and not s.endswith(":"):
            out.append(text); continue
        ins = Ins(s)
        if ins.label is not None:
            srcs = saved.pop(ins.label, [])
            if not dead: srcs = srcs + [st]
            if not srcs: st = State()
            else:
                base = max(srcs, key=lambda x: (len(x.vm), len(x.lg))).copy()
                for o in srcs:
                    pend = lambda x: (set().union(*x.vm) if x.vm else set()) | (set().union(*[y[0] for y in x.lg]) if x.lg else set())
                    suffix = o.vm == base.vm[len(base.vm) - len(o.vm):] and o.lg == base.lg[len(base.lg) - len(o.lg):]
                    if pend(o) and not suffix:
                        raise RuntimeError(f"pending loads differ at label {ins.label}")
                if any(x[1] for o in srcs for x in o.lg) and not any(x[1] for x in base.lg): base.lg.append((set(), True))
                base.hists = [list(h) for o in srcs for h in o.hists]
                st = base
            entry[ins.label] = st.copy()
            dead = False
            out.append(text); continue
        if dead:
            st = State(); dead = False
        touch = ins.src | ins.dst
        if ins.op == "s_waitcnt":
            apply_wait(ins)
        else:
            nv = None
            for i, d in enumerate(st.vm):
                if d & touch: nv = len(st.vm) - 1 - i
            nl = None
            for i, (d, sm) in enumerate(st.lg):
                if d & touch: nl = len(st.lg) - 1 - i
            if nl is not None and any(x[1] for x in st.lg): nl = 0
            if nv is not None or nl is not None:
                w = "s_waitcnt" + (f" vmcnt({min(nv,63)})" if nv is not None else "") + (f" lgkmcnt({min(nl,15)})" if nl is not None else "")
                wi = Ins(w); apply_wait(wi); out.append("    " + w); st.push(wi); nwait += 1
        need = 0
        for h in st.hists:
            dist = 0
            for p in reversed(h):
                n = need_states(p, ins)
                if n > dist: need = max(need, n - dist)
                dist += p.states
                if dist >= 20: break
        while need > 0:
            k = min(need, 16)
            ni = Ins(f"s_nop {k-1}"); out.append(f"    s_nop {k-1}"); st.push(ni); need -= k; nnop += 1
        out.append(text)
        st.push(ins)
        if ins.kind == "vmem":
            st.vm.append(set(ins.dst)); st.tags.append(tag)
        elif ins.kind == "ds":
            st.lg.append((set(ins.dst), False))
        elif ins.kind == "smem":
            st.lg.append((set() if ins.op.startswith("s_mem") else set(ins.dst), True))
        if ins.op.startswith(("s_cbranch", "s_branch")):
            tgt = ins.toks[0]
            if tgt in entry:
                e = entry[tgt]
                if [x for x in st.vm if x] or [x for x in st.lg if x[0] and not x[1]]: raise RuntimeError(f"loads pending on the back edge to {tgt}")
            else:
                saved.setdefault(tgt, []).append(st.copy())
        if ins.op in ("s_branch", "s_endpgm"):
            dead = True
    if stats is not None:
        stats.update(nnop=nnop, nwait=nwait)
    return out

class Asm:
    def __init__(self):
        self.lines = []
        self.launches = []
        self.descs = []
        self.nlab = 0
        self.diag = False
        self.kidx = -1
    def stamp(self, i):
        if self.diag: self(f"{'s_memtime' if self.diag == 2 else 's_memrealtime'} s[{64+2*i}:{65+2*i}]")
    def end(self):
        if self.diag:
            self.stamp(15)
            self("s_waitcnt lgkmcnt(0)\nv_mbcnt_lo_u32_b32 v1, -1, 0\nv_mbcnt_hi_u32_b32 v1, -1, v1\nv_mov_b32 v2, 0")
            for i in range(16): self(f"v_writelane_b32 v2, s{64+2*i}, {i}")
            self(f"""s_lshl_b32 s62, s62, 6
            s_add_u32 s62, s62, {0x3100000 + self.kidx * 0x40000}
            v_lshlrev_b32 v1, 2, v1
            s_mov_b64 exec, 0xffff
            buffer_store_dword v2, v1, s[28:31], s62 offen""")
        self("s_endpgm")
    def diag_init(self):
        if self.diag:
            self.stamp(0)
            self("v_lshrrev_b32 v1, 6, v0\ns_nop 0\nv_readfirstlane_b32 s62, v1\ns_lshl_b32 s63, s2, 2\ns_add_u32 s62, s62, s63")
            for i in range(1, 15): self(f"s_mov_b32 s{64+2*i}, 0")
    def __call__(self, s):
        for l in s.split("\n"):
            l = l.strip()
            if not l: continue
            self.lines.append(l if l.endswith(":") else "    " + l)
    def label(self, base="L"):
        self.nlab += 1
        return f"{base}_{self.nlab}"
    def kernel(self, name, grid, block, lds, vgpr, agpr=0, sgpr=96):
        self.launches.append(f"; @launch kernel={name} grid=({grid},1,1) block=({block},1,1) lds={lds}")
        self.lines += [f".globl {name}", ".p2align 8", f".type {name},@function", f"{name}:"]
        self.kidx += 1
        if self.diag: sgpr = 100
        acc = (vgpr + 3) // 4 * 4
        nfv = acc + agpr if agpr else vgpr
        assert nfv <= 512 and acc <= 256
        self.descs.append(f""".p2align 6
.amdhsa_kernel {name}
  .amdhsa_next_free_vgpr {nfv}
  .amdhsa_next_free_sgpr {sgpr}
  .amdhsa_accum_offset {acc}
  .amdhsa_group_segment_fixed_size 0
  .amdhsa_kernarg_size 136
  .amdhsa_user_sgpr_count 2
  .amdhsa_user_sgpr_kernarg_segment_ptr 1
  .amdhsa_system_sgpr_workgroup_id_x 1
  .amdhsa_float_denorm_mode_32 3
  .amdhsa_float_denorm_mode_16_64 3
  .amdhsa_ieee_mode 0
.end_amdhsa_kernel""")
    def text(self, header="", auto=True):
        out = []
        if header:
            out.append(header.rstrip("\n"))
        out += self.launches
        out.append('.amdgcn_target "amdgcn-amd-amdhsa--gfx950"')
        out.append(".text")
        self.stats = {}
        out += finalize(self.lines, self.stats) if auto else self.lines
        out.append('.section .rodata,"a"')
        out += self.descs
        return "\n".join(out) + "\n"

def vr(b, n=1): return f"v{b}" if n == 1 else f"v[{b}:{b+n-1}]"
def ar(b, n=1): return f"a{b}" if n == 1 else f"a[{b}:{b+n-1}]"
def sr(b, n=1): return f"s{b}" if n == 1 else f"s[{b}:{b+n-1}]"
def fbits(x):
    import struct
    return "0x%08x" % struct.unpack("<I", struct.pack("<f", x))[0]

def interleave(main, fillers, start=0, end=None):
    end = len(main) if end is None else end
    n = end - start
    gaps = [[] for _ in main]
    for i, f in enumerate(fillers):
        gaps[start + min(n - 1, i * n // max(1, len(fillers)))].append(f)
    out = []
    for m, g in zip(main, gaps):
        out.append(m); out += g
    return out

def icost(x):
    c = 0
    for l in x.split("\n"):
        op = l.strip().split(" ")[0]
        if not op or op.startswith(("s_", "@")): continue
        if op in TRANS or op.startswith(("buffer_", "global_", "ds_write")): c += 8
        else: c += 4
    return c

class Sched:
    def __init__(self, mf):
        self.mf = mf
        self.pre = [[] for _ in mf]
        self.post = [[] for _ in mf]
        self.cost = [0] * len(mf)
    def put(self, m, x):
        self.post[m].append(x); self.cost[m] += icost(x)
    def put_free(self, m, x):
        while m < len(self.mf) - 1 and self.cost[m] + icost(x) > 8: m += 1
        self.put(m, x); return m
    def stream(self, lo, hi, st):
        rem = sum(icost(x) for x in st)
        i = 0; err = 0.0
        for m in range(lo, hi):
            room = sum(max(0, 8 - self.cost[k]) for k in range(m, hi))
            gaps = hi - m
            if rem >= room:
                err += (rem - room) / gaps
                while i < len(st) and (self.cost[m] < 8 or err >= icost(st[i]) or m == hi - 1):
                    over = max(0, self.cost[m] + icost(st[i]) - max(8, self.cost[m]))
                    err -= over; rem -= icost(st[i]); self.put(m, st[i]); i += 1
            else:
                err += max(0, 8 - self.cost[m]) * rem / room
                while i < len(st) and (m == hi - 1 or (self.cost[m] + icost(st[i]) <= 8 and err >= icost(st[i]) * 0.5)):
                    err -= icost(st[i]); rem -= icost(st[i]); self.put(m, st[i]); i += 1
    def cycles(self, lo=0, hi=None):
        return sum(8 + max(8, c) for c in self.cost[lo:hi])
    def emit(self, a, lo=0, hi=None):
        for m in range(lo, len(self.mf) if hi is None else hi):
            for x in self.pre[m]: a(x)
            a(self.mf[m])
            for x in self.post[m]: a(x)
```

```python
from common import *
import math
N_KGEN, N_LN, N_MOD = 288, 128, 216
LDS0 = 53760

def cmul(a, d, z, w):
    t = d if d not in (z, w) else 60
    a(f"v_pk_mul_f32 {vr(t,2)}, {vr(z,2)}, {vr(w,2)} op_sel:[0,0] op_sel_hi:[0,1]")
    a(f"v_pk_fma_f32 {vr(d,2)}, {vr(z,2)}, {vr(w,2)}, {vr(t,2)} op_sel:[1,1,0] op_sel_hi:[1,0,1] neg_lo:[1,0,0]")

def kgen(a):
    load_srds(a, [("lar", 8), ("aim", 12), ("cre", 16), ("cim", 20), ("ldt", 24), ("ws", 28)])
    a("""
    v_lshrrev_b32 v1, 6, v0
    v_and_b32 v2, 63, v0
    v_readfirstlane_b32 s3, v1
    s_lshr_b32 s4, s3, 1
    s_and_b32 s5, s3, 1
    s_lshl_b32 s6, s2, 1
    s_add_u32 s6, s6, s4
    s_lshl_b32 s7, s6, 8
    s_lshl_b32 s32, s5, 6
    v_add_u32 v3, s32, v2
    v_lshlrev_b32 v4, 1, v3
    v_xor_b32 v5, 128, v4
    s_lshl_b32 s33, s6, 1
    v_mov_b32 v6, s33
    s_waitcnt lgkmcnt(0)
    buffer_load_ushort v10, v6, s[24:27], 0 offen
    buffer_load_ushort v11, v4, s[8:11], s7 offen
    buffer_load_ushort v12, v4, s[12:15], s7 offen
    buffer_load_ushort v14, v4, s[16:19], s7 offen
    buffer_load_ushort v15, v4, s[20:23], s7 offen
    buffer_load_ushort v16, v5, s[16:19], s7 offen
    buffer_load_ushort v17, v5, s[20:23], s7 offen
    """)
    a(f"s_mul_i32 s34, s4, {52*512}\nv_lshlrev_b32 v7, 2, v3\nv_add_u32 v7, s34, v7")
    for k in range(16):
        a(f"v_xor_b32 v{64+k}, {k*16}, v7")
    a(f"""
    s_mov_b32 s36, {fbits(LOG2E)}
    s_mov_b32 s37, {fbits(1/(2*math.pi))}
    v_lshlrev_b32 v10, 16, v10
    v_mul_f32 v10, s36, v10
    v_exp_f32 v10, v10
    v_lshlrev_b32 v11, 16, v11
    v_mul_f32 v11, s36, v11
    v_exp_f32 v11, v11
    v_lshlrev_b32 v12, 16, v12
    """)
    a.stamp(1)
    bf16_round(a, "v10", "v10")
    bf16_round(a, "v11", "v11")
    a("""
    v_mul_f32 v11, v11, v10
    v_mul_f32 v12, v12, v10
    v_mul_f32 v11, s36, v11
    v_mul_f32 v12, s37, v12
    """)
    for i, p in enumerate((1.0, 8.0, 64.0, 256.0)):
        a(f"v_mul_f32 v{30+i}, {fbits(-p)}, v11\nv_mul_f32 v{34+i}, {fbits(p)}, v12")
    for i in range(4):
        a(f"v_exp_f32 v{30+i}, v{30+i}\nv_fract_f32 v{34+i}, v{34+i}")
    for i in range(4):
        a(f"v_cos_f32 v{20+2*i}, v{34+i}\nv_sin_f32 v{21+2*i}, v{34+i}")
    a("""
    v_lshlrev_b32 v14, 16, v14
    v_lshlrev_b32 v15, 16, v15
    v_lshlrev_b32 v16, 16, v16
    v_lshlrev_b32 v17, 16, v17
    v_max3_f32 v16, |v14|, |v15|, |v16|
    v_max_f32 v16, |v16|, |v17|
    """)
    for i in range(4):
        a(f"v_mul_f32 v{20+2*i}, v{20+2*i}, v{30+i}\nv_mul_f32 v{21+2*i}, v{21+2*i}, v{30+i}")
    for k in (8, 4, 2, 1):
        a(f"v_max_f32_dpp v16, v16, v16 row_ror:{k} row_mask:0xf bank_mask:0xf bound_ctrl:1")
    group_allreduce(a, "v16", "v17", "v_max_f32")
    a("""
    v_frexp_exp_i32_f32 v16, v16
    v_sub_u32 v17, 0, v16
    v_ldexp_f32 v14, v14, v17
    v_ldexp_f32 v15, v15, v17
    v_add_u32 v16, 1, v16
    v_ldexp_f32 v10, v10, v16
    """)
    ci = [0]
    def put(row, r, neg):
        t = 56 + ci[0] % 4; ci[0] += 1
        a(f"v_cvt_pk_f16_f32 v{t}, v{r}, {'-' if neg else ''}v{r+1}")
        a(f"ds_write_b32 v{64 + (row & 15)}, v{t} offset:{row*512}")
    E1, E8, E64, E256 = 20, 22, 24, 26
    a("v_mov_b32 v56, 0x3c00\nv_subrev_u32 v57, s34, v64\nds_write_b32 v57, v56")
    ci[0] = 1
    P = {1: E8}
    put(1, E8, False)
    R = {0: 14}
    put(32, 14, True)
    Q = {1: E64}
    put(8, E64, False)
    for b in range(2, 8):
        P[b] = 80 + 2*b
        cmul(a, P[b], P[b-1] if b != 4 else P[2], E8 if b != 4 else P[2])
        R[b-1] = 100 + 2*b
        cmul(a, R[b-1], R[b-2], E1)
        put(b, P[b], False); put(32 + b - 1, R[b-1], True)
    R[7] = 116
    cmul(a, R[7], R[6], E1); put(39, R[7], True)
    Q[2], Q[3] = 96, 98
    cmul(a, Q[2], E64, E64); put(16, Q[2], False)
    cmul(a, Q[3], Q[2], E64); put(24, Q[3], False)
    chain0 = [40, 44, 46, 48, 49, 50, 51, 52]
    chain4 = [42, 45, 47]
    jobs = [(q, b) for q in (1, 2, 3) for b in range(1, 8)]
    c0, c4 = R[0], R[4]
    singles = [(41, R[2]), (43, R[6])]
    for i in range(21):
        q, b = jobs[i]
        t = 40 + 2*(i % 4)
        cmul(a, t, P[b], Q[q]); put(8*q + b, t, False)
        if i < 8:
            d = 118 + 2*(i % 2); cmul(a, d, c0, E256); c0 = d; put(chain0[i], d, True)
        elif i < 11:
            d = 122 + 2*(i % 2); cmul(a, d, c4, E256); c4 = d; put(chain4[i-8], d, True)
        elif i < 13:
            row, src = singles[i-11]; cmul(a, 48, src, E256); put(row, 48, True)
    a.stamp(2)
    a(f"""
    v_and_b32 v1, 15, v2
    v_lshrrev_b32 v3, 4, v2
    v_xor_b32 v4, v3, v1
    v_lshlrev_b32 v4, 4, v4
    v_min_u32 v5, 4, v1
    v_xor_b32 v6, v3, v5
    v_lshlrev_b32 v6, 4, v6
    v_lshl_add_u32 v4, v1, 9, v4
    v_lshl_add_u32 v6, v5, 9, v6
    v_add_u32 v4, s34, v4
    v_add_u32 v6, s34, v6
    s_lshl_b32 s35, s5, 13
    v_add_u32 v5, s35, v4
    v_subrev_u32 v8, s34, v5
    v_add_u32 v9, s35, v1
    v_cmp_eq_u32 vcc, 0, v9
    v_cndmask_b32 v5, v5, v8, vcc
    s_waitcnt lgkmcnt(0)
    s_barrier
    """)
    for ks in range(8):
        x = (ks & 3) * 64; o = (ks >> 2) * 256
        b = 20 + 12 * ks
        a(f"v_xor_b32 v8, {x}, v5\nds_read_b128 {vr(b,4)}, v8 offset:{o}")
        a(f"v_xor_b32 v8, {x}, v4\nds_read_b128 {vr(b+4,4)}, v8 offset:{32*512+o}")
        a(f"v_xor_b32 v8, {x}, v6\nds_read_b128 {vr(b+8,4)}, v8 offset:{48*512+o}")
    a.stamp(3)
    a(f"""
    s_mul_i32 s38, s6, {UT_PITCH}
    s_add_u32 s38, s38, {WS_UT}
    s_lshl_b32 s35, s5, 4
    v_add_u32 v1, s35, v1
    v_lshlrev_b32 v8, 4, v1
    v_add_u32 v9, 8, v8
    v_cmp_eq_u32 vcc, 1, v3
    v_cndmask_b32 v8, v8, v9, vcc
    v_lshlrev_b32 v9, 3, v1
    v_add_u32 v9, 512, v9
    v_cmp_eq_u32 vcc, 2, v3
    v_cndmask_b32 v8, v8, v9, vcc
    v_lshlrev_b32 v9, 2, v1
    v_add_u32 v9, 768, v9
    v_cmp_eq_u32 vcc, 3, v3
    v_cndmask_b32 v8, v8, v9, vcc
    v_add_u32 v9, 4, v8
    v_add_u32 v11, 128, v8
    v_cndmask_b32 v9, v9, v11, vcc
    v_lshlrev_b32 v11, 1, v1
    v_add_u32 v11, 1024, v11
    v_mov_b32 v12, {OOB}
    v_cmp_eq_u32 vcc, 0, v3
    v_cndmask_b32 v11, v12, v11, vcc
    v_mov_b32 v13, 1280
    v_lshl_add_u32 v14, v3, 5, v1
    v_cmp_eq_u32 vcc, 32, v14
    v_cndmask_b32 v13, v11, v13, vcc
    """)
    for ks in range(8):
        b = 20 + 12 * ks
        c0_, c1_ = ("0", "0") if ks == 0 else ("v[120:123]", "v[124:127]")
        a(f"v_mfma_f32_16x16x32_f16 v[120:123], {vr(b+4,4)}, {vr(b,4)}, {c0_}")
        a(f"v_mfma_f32_16x16x32_f16 v[124:127], {vr(b+8,4)}, {vr(b,4)}, {c1_}")
    a(f"""
    s_lshl_b32 s39, s6, 2
    s_add_u32 s39, s39, {WS_KSC}
    v_cmp_eq_u32 vcc, 0, v14
    v_cndmask_b32 v14, v12, v14, vcc
    buffer_store_dword v10, v14, s[28:31], s39 offen
    v_cvt_pk_f16_f32 v20, v120, v121
    v_cvt_pk_f16_f32 v21, v122, v123
    v_cvt_pk_f16_f32 v22, v124, v125
    v_cvt_pk_f16_f32 v23, v126, v127
    buffer_store_dword v20, v8, s[28:31], s38 offen
    buffer_store_dword v21, v9, s[28:31], s38 offen
    buffer_store_short v22, v13, s[28:31], s38 offen
    buffer_store_short_d16_hi v22, v11, s[28:31], s38 offen offset:64
    buffer_store_short v23, v11, s[28:31], s38 offen offset:128
    buffer_store_short_d16_hi v23, v11, s[28:31], s38 offen offset:192
    """)
    a.end()

def ln1(a):
    PITCH = 1168
    load_srds(a, [("u", 8), ("ws", 28)])
    a(f"""
    s_sub_u32 s3, s2, {N_KGEN}
    v_lshrrev_b32 v1, 4, v0
    v_and_b32 v2, 15, v0
    s_mul_i32 s4, s3, {16*1152}
    v_mul_u32_u24 v3, 1152, v1
    v_lshl_add_u32 v4, v2, 3, v3
    v_lshl_add_u32 v3, v2, 4, v3
    s_waitcnt lgkmcnt(0)
    """)
    for u in range(4):
        a(f"buffer_load_dwordx4 {vr(8+4*u,4)}, v3, s[8:11], s4 offen offset:{256*u}")
    a("buffer_load_dwordx2 v[24:25], v4, s[8:11], s4 offen offset:1024")
    a(f"""
    v_mul_u32_u24 v5, {PITCH}, v1
    v_lshl_add_u32 v6, v2, 3, v5
    v_lshl_add_u32 v5, v2, 4, v5
    s_mov_b32 s6, 0x3f803f80
    v_mov_b32 v26, 0
    v_mov_b32 v27, 0
    """)
    for i in range(18):
        a(f"v_dot2c_f32_bf16 v{26 + i % 2}, s6, v{8+i}")
    a.stamp(1)
    XO = 16 * PITCH
    for u in range(4):
        a(f"ds_write_b128 v5, {vr(8+4*u,4)} offset:{XO + 256*u}")
    a(f"ds_write_b64 v6, v[24:25] offset:{XO + 1024}")
    a("v_add_f32 v26, v26, v27")
    row_allreduce_add(a, "v26")
    a(f"v_mul_f32 v26, {fbits(1/576)}, v26")
    bf16_round(a, "v28", "v26")
    a("v_sub_f32 v26, v26, v28\nv_mov_b32 v29, v28\nv_mov_b32 v30, 0\nv_mov_b32 v31, 0")
    for i in range(18):
        a(f"v_lshlrev_b32 v{32+2*i}, 16, v{8+i}\nv_and_b32 v{33+2*i}, 0xffff0000, v{8+i}")
        a(f"v_pk_add_f32 {vr(32+2*i,2)}, {vr(32+2*i,2)}, v[28:29] neg_lo:[0,1] neg_hi:[0,1]")
        a(f"v_pk_fma_f32 v[30:31], {vr(32+2*i,2)}, {vr(32+2*i,2)}, v[30:31]")
    a("v_add_f32 v30, v30, v31")
    row_allreduce_add(a, "v30")
    a(f"v_mul_f32 v30, {fbits(1/576)}, v30\nv_fma_f32 v30, -v26, v26, v30\nv_max_f32 v30, 0, v30")
    bf16_round(a, "v30", "v30")
    a(f"v_add_f32 v30, {fbits(1e-5)}, v30")
    bf16_round(a, "v30", "v30")
    a("v_sqrt_f32 v30, v30")
    bf16_round(a, "v30", "v30")
    a("v_rcp_f32 v30, v30\nv_mov_b32 v31, v30")
    for i in range(18):
        a(f"v_pk_mul_f32 {vr(32+2*i,2)}, {vr(32+2*i,2)}, v[30:31]")
        a(f"v_cvt_pk_f16_f32 v{8+i}, v{32+2*i}, v{33+2*i}")
    for u in range(4):
        a(f"ds_write_b128 v5, {vr(8+4*u,4)} offset:{256*u}")
    a("ds_write_b64 v6, v[24:25] offset:1024")
    a.stamp(2)
    a(f"""
    v_lshrrev_b32 v1, 6, v0
    v_readfirstlane_b32 s5, v1
    v_bfe_u32 v1, v0, 4, 1
    v_bfe_u32 v3, v0, 5, 1
    v_bfe_u32 v4, v0, 2, 2
    v_and_b32 v5, 3, v0
    v_lshlrev_b32 v5, 3, v5
    v_lshl_add_u32 v5, v3, 5, v5
    v_lshl_add_u32 v6, v1, 3, v4
    v_mul_u32_u24 v6, {PITCH}, v6
    v_add_u32 v6, v6, v5
    v_lshlrev_b32 v7, 3, v1
    v_sub_u32 v7, v7, v4
    v_add_u32 v7, 3, v7
    v_mul_u32_u24 v7, {PITCH}, v7
    v_add_u32 v7, v7, v5
    v_lshl_add_u32 v4, v3, 4, v2
    v_lshlrev_b32 v4, 5, v4
    v_lshl_add_u32 v4, v1, 4, v4
    s_mul_i32 s4, s3, {NTP}
    s_lshl_b32 s7, s5, 6
    v_add_u32 v6, s7, v6
    v_add_u32 v7, s7, v7
    s_lshl_b32 s7, s5, 10
    s_add_u32 s4, s4, s7
    s_add_u32 s32, s4, {WS_NT}
    s_add_u32 s33, s4, {WS_XT}
    s_waitcnt lgkmcnt(0)
    s_barrier
    """)
    a.stamp(3)
    lab = a.label("ln_skip")
    for i in range(5):
        if i == 4:
            a(f"s_cmp_ge_u32 s5, 2\ns_cbranch_scc1 {lab}")
        b = 8 + 8 * i
        a(f"ds_read_b64_tr_b16 {vr(b,2)}, v7 offset:{4*PITCH + 256*i}")
        a(f"ds_read_b64_tr_b16 {vr(b+2,2)}, v7 offset:{256*i}")
        a(f"ds_read_b64_tr_b16 {vr(b+4,2)}, v6 offset:{XO + 256*i}")
        a(f"ds_read_b64_tr_b16 {vr(b+6,2)}, v6 offset:{XO + 4*PITCH + 256*i}")
        a(f"buffer_store_dwordx4 {vr(b,4)}, v4, s[28:31], s32 offen{WT_SC}")
        a(f"buffer_store_dwordx4 {vr(b+4,4)}, v4, s[28:31], s33 offen{WT_SC}")
        a("s_add_u32 s32, s32, 4096\ns_add_u32 s33, s33, 4096")
    a(f"{lab}:"); a.end()

def mod(a):
    load_srds(a, [("wmod", 8), ("c", 12), ("ws", 28)])
    a(f"""
    s_sub_u32 s3, s2, {N_KGEN + N_LN}
    s_mul_hi_u32 s4, s3, {(2**32 + 53)//54}
    s_mul_i32 s5, s4, 54
    s_sub_u32 s5, s3, s5
    v_lshrrev_b32 v1, 3, v0
    v_and_b32 v2, 7, v0
    s_mul_i32 s6, s4, {144*6912}
    s_lshl_b32 s7, s5, 7
    s_add_u32 s6, s6, s7
    v_mul_u32_u24 v3, 6912, v1
    v_lshl_add_u32 v3, v2, 4, v3
    v_mov_b32 v5, {OOB}
    v_cmp_gt_u32 vcc, 16, v1
    v_cndmask_b32 v4, v5, v3, vcc
    v_lshlrev_b32 v6, 1, v1
    v_cndmask_b32 v7, v5, v6, vcc
    s_mul_i32 s32, s4, 288
    s_waitcnt lgkmcnt(0)
    """)
    for u in range(5):
        a(f"buffer_load_ushort v{40+u}, {'v6' if u < 4 else 'v7'}, s[12:15], s32 offen offset:{64*u}")
    for u in range(5):
        a(f"buffer_load_dwordx4 {vr(8+4*u,4)}, {'v3' if u < 4 else 'v4'}, s[8:11], s6 offen")
        if u < 4: a(f"s_add_u32 s6, s6, {32*6912}")
    a(f"s_mov_b32 s33, {fbits(-LOG2E)}")
    for u in range(5):
        x, t = 40 + u, 46 + u
        a(f"v_lshlrev_b32 v{x}, 16, v{x}\nv_mul_f32 v{t}, s33, v{x}\nv_exp_f32 v{t}, v{t}")
    for u in range(5):
        x, t = 40 + u, 46 + u
        a(f"v_add_f32 v{t}, 1.0, v{t}\nv_rcp_f32 v{t}, v{t}")
    for u in range(5):
        x, t = 40 + u, 46 + u
        a(f"v_mul_f32 v{x}, v{x}, v{t}")
        bf16_round(a, f"v{x}", f"v{x}")
    for u in range(5):
        for i in range(4):
            a(f"v_lshlrev_b32 v52, 16, v{8+4*u+i}\nv_and_b32 v53, 0xffff0000, v{8+4*u+i}")
            s = 40 + u
            sp, sel = (s & ~1), s & 1
            if u == 0:
                a(f"v_pk_mul_f32 {vr(30+2*i,2)}, v[52:53], {vr(sp,2)} op_sel:[0,{sel}] op_sel_hi:[1,{sel}]")
            else:
                a(f"v_pk_fma_f32 {vr(30+2*i,2)}, v[52:53], {vr(sp,2)}, {vr(30+2*i,2)} op_sel:[0,{sel},0] op_sel_hi:[1,{sel},1]")
    a.stamp(2)
    for i in range(8):
        a(f"v_add_f32_dpp v{30+i}, v{30+i}, v{30+i} row_ror:8 row_mask:0xf bank_mask:0xf bound_ctrl:1")
    for i in range(4):
        a(f"v_permlane16_swap_b32 v{30+i}, v{34+i}")
    for i in range(4):
        a(f"v_add_f32 v{30+i}, v{30+i}, v{34+i}")
    for i in range(2):
        a(f"v_permlane32_swap_b32 v{30+i}, v{32+i}")
    a(f"""
    v_add_f32 v30, v30, v32
    v_add_f32 v31, v31, v33
    v_bfe_u32 v4, v0, 4, 1
    v_bfe_u32 v5, v0, 5, 1
    v_lshrrev_b32 v6, 6, v0
    v_lshlrev_b32 v2, 5, v2
    v_lshl_add_u32 v2, v4, 4, v2
    v_lshl_add_u32 v2, v5, 3, v2
    v_lshl_add_u32 v2, v6, 8, v2
    ds_write_b64 v2, v[30:31]
    v_and_b32 v1, 63, v0
    v_lshlrev_b32 v1, 2, v1
    s_mul_i32 s6, s4, {3456*4}
    s_lshl_b32 s7, s5, 8
    s_add_u32 s6, s6, s7
    s_add_u32 s6, s6, {WS_MODP}
    s_waitcnt lgkmcnt(0)
    s_barrier
    ds_read2st64_b32 v[8:9], v1 offset0:0 offset1:1
    ds_read2st64_b32 v[10:11], v1 offset0:2 offset1:3
    v_mov_b32 v5, {OOB}
    v_cmp_gt_u32 vcc, 64, v0
    v_cndmask_b32 v1, v5, v1, vcc
    v_add_f32 v8, v8, v9
    v_add_f32 v10, v10, v11
    v_add_f32 v8, v8, v10
    buffer_store_dword v8, v1, s[28:31], s6 offen
    """)
    lab = a.label("mod_done")
    a(f"""
    s_cmp_ge_u32 s3, 4
    s_cbranch_scc1 {lab}
    s_lshl_b32 s3, s3, 12
    s_add_u32 s3, s3, {WS_CNT}
    v_lshlrev_b32 v1, 4, v0
    v_mov_b32 v8, 0
    v_mov_b32 v9, 0
    v_mov_b32 v10, 0
    v_mov_b32 v11, 0
    buffer_store_dwordx4 v[8:11], v1, s[28:31], s3 offen
    {lab}:
    """)
    a.end()

def k0(a, name="k0_kernel"):
    a.kernel(name, N_KGEN + N_LN + N_MOD, 256, LDS0, 128, sgpr=48)
    a(f"""
    s_cmp_ge_u32 s2, {N_KGEN + N_LN + N_MOD}
    s_cbranch_scc1 k0_exit
    """)
    a.diag_init()
    a(f"""
    s_cmp_ge_u32 s2, {N_KGEN + N_LN}
    s_cbranch_scc1 k0_mod
    s_cmp_ge_u32 s2, {N_KGEN}
    s_cbranch_scc1 k0_ln
    """)
    kgen(a)
    a("k0_ln:"); ln1(a)
    a("k0_mod:"); mod(a)
    a("k0_exit:\ns_endpgm")

if __name__ == "__main__":
    a = Asm(); k0(a); open("k0_tmp.s", "w").write(a.text()); print(a.stats)
```

```python
from common import *
N_CONV, N_TRANS = 144, 108
LDS1 = 3 * 36864
CHP = 22048
COPY = [0, 544 * 8, 1066 * 8, 1588 * 8]
HIMG = 16864

def conv(a):
    load_srds(a, [("ws", 28), ("dsk", 12)])
    a(f"""
    v_lshrrev_b32 v1, 6, v0
    v_and_b32 v2, 63, v0
    v_readfirstlane_b32 s3, v1
    s_lshl_b32 s4, s2, 2
    s_add_u32 s5, s4, s3
    v_and_b32 v3, 3, v2
    v_bfe_u32 v4, v2, 2, 2
    v_lshrrev_b32 v5, 4, v2
    v_mul_u32_u24 v3, {3456*4}, v3
    v_mul_u32_u24 v6, {576*4}, v5
    v_add_u32 v3, v3, v6
    v_lshl_add_u32 v3, v4, 2, v3
    s_lshl_b32 s6, s4, 2
    s_add_u32 s6, s6, {WS_MODP}
    s_mul_i32 s7, s5, {UT_PITCH}
    s_add_u32 s7, s7, {WS_UT}
    v_lshlrev_b32 v6, 3, v2
    v_lshlrev_b32 v7, 2, v2
    v_lshrrev_b32 v8, 3, v2
    v_and_b32 v9, 7, v2
    v_mul_u32_u24 v10, {NTP}, v8
    v_lshl_add_u32 v10, v9, 4, v10
    s_mul_i32 s32, s3, {8*NTP}
    s_lshl_b32 s33, s4, 5
    s_add_u32 s32, s32, s33
    s_add_u32 s32, s32, {WS_NT}
    s_lshl_b32 s34, s5, 1
    v_mov_b32 v11, s34
    s_lshl_b32 s35, s5, 2
    s_add_u32 s35, s35, {WS_KSC}
    v_mov_b32 v12, 0
    s_waitcnt lgkmcnt(0)
    buffer_load_dword v16, v3, s[28:31], s6 offen
    buffer_load_dwordx4 v[20:23], v6, s[28:31], s7 offen
    buffer_load_dwordx2 v[24:25], v7, s[28:31], s7 offen offset:512
    buffer_load_dwordx2 v[26:27], v7, s[28:31], s7 offen offset:768
    buffer_load_dwordx2 v[28:29], v7, s[28:31], s7 offen offset:1024
    """)
    for u in range(4):
        a(f"buffer_load_dwordx4 {vr(32+4*u,4)}, v10, s[28:31], s32 offen")
        if u < 3: a(f"s_add_u32 s32, s32, {32*NTP}")
    a(f"""
    buffer_load_dword v17, v12, s[28:31], s35 offen
    buffer_load_ushort v18, v11, s[12:15], 0 offen
    v_and_b32 v13, 15, v2
    v_lshlrev_b32 v14, 1, v13
    v_lshrrev_b32 v15, 1, v5
    v_add_u32 v14, v14, v15
    v_mul_u32_u24 v14, {NTP}, v14
    v_and_b32 v15, 1, v5
    v_lshl_add_u32 v14, v15, 4, v14
    s_lshl_b32 s36, s5, 5
    s_add_u32 s36, s36, {WS_XT}
    """)
    for t in range(4):
        a(f"buffer_load_dwordx4 {vr(96+4*t,4)}, v14, s[28:31], s36 offen")
        if t < 3: a(f"s_add_u32 s36, s36, {32*NTP}")
    a(f"""
    s_mul_i32 s37, s3, {CHP}
    v_lshlrev_b32 v48, 3, v2
    v_add_u32 v48, s37, v48
    v_lshlrev_b32 v49, 4, v2
    v_add_u32 v49, s37, v49
    v_lshlrev_b32 v50, 5, v2
    v_add_u32 v50, s37, v50
    v_mul_u32_u24 v51, 1280, v5
    v_lshl_add_u32 v51, v13, 4, v51
    v_add_u32 v51, s37, v51
    v_mov_b32 v52, 0
    v_mov_b32 v53, 0
    v_mov_b32 v54, 0
    v_mov_b32 v55, 0
    ds_write_b128 v51, v[52:55] offset:{HIMG}
    v_bfe_u32 v56, v2, 1, 2
    v_mul_u32_u24 v57, {CHP}, v56
    v_and_b32 v58, 1, v8
    v_lshlrev_b32 v58, 1, v58
    v_and_b32 v59, 1, v2
    v_add_u32 v58, v58, v59
    v_mul_u32_u24 v58, 1280, v58
    v_add_u32 v57, v57, v58
    v_lshrrev_b32 v58, 1, v8
    v_lshl_add_u32 v57, v58, 4, v57
    s_lshl_b32 s38, s3, 6
    v_add_u32 v57, s38, v57
    v_lshlrev_b32 v56, 4, v56
    v_add_u32 v58, 64, v56
    v_bfe_u32 v60, v2, 3, 2
    v_cmp_eq_u32 vcc, 1, v60
    v_mov_b32 v61, {COPY[1]}
    v_cndmask_b32 v61, 0, v61, vcc
    v_cmp_eq_u32 vcc, 2, v60
    v_mov_b32 v62, {COPY[2]}
    v_cndmask_b32 v61, v61, v62, vcc
    v_cmp_eq_u32 vcc, 3, v60
    v_mov_b32 v62, {COPY[3]}
    v_cndmask_b32 v61, v61, v62, vcc
    v_lshl_add_u32 v61, v9, 3, v61
    v_add_u32 v61, s37, v61
    v_cmp_eq_u32 vcc, 63, v2
    v_mov_b32 v62, 0x03020100
    v_mov_b32 v63, 0x01000100
    v_cndmask_b32 v62, v62, v63, vcc
    v_mov_b32 v63, 0x07060504
    v_mov_b32 v64, 0x03020302
    v_cndmask_b32 v63, v63, v64, vcc
    s_mov_b32 s40, 0x01000100
    s_mov_b32 s41, 0x03020302
    s_mov_b32 s42, 0x05040302
    """)
    a.stamp(1)
    a("""
    v_add_f32_dpp v16, v16, v16 quad_perm:[1,0,3,2] row_mask:0xf bank_mask:0xf bound_ctrl:1
    v_add_f32_dpp v16, v16, v16 quad_perm:[2,3,0,1] row_mask:0xf bank_mask:0xf bound_ctrl:1
    """)
    bf16_round(a, "v16", "v16")
    a("""
    ds_bpermute_b32 v65, v56, v16
    ds_bpermute_b32 v66, v58, v16
    s_lshl_b32 s39, s3, 2
    s_add_u32 s39, s39, 32
    v_readlane_b32 s43, v16, s39
    """)
    a.stamp(2)
    a(f"""
    v_readfirstlane_b32 s44, v20
    v_readfirstlane_b32 s45, v21
    s_lshl_b32 s46, s44, 16
    s_lshr_b32 s47, s44, 16
    s_lshl_b32 s45, s45, 16
    s_or_b32 s47, s47, s45
    v_writelane_b32 v53, s46, 15
    v_writelane_b32 v53, s44, 23
    v_writelane_b32 v52, s46, 31
    v_writelane_b32 v53, s47, 31
    s_mov_b32 exec_hi, 0
    ds_write_b64 v61, v[52:53]
    s_mov_b32 exec_hi, -1
    v_perm_b32 v23, v23, v22, v63
    v_perm_b32 v22, v22, v22, v62
    ds_write_b64 v48, v[20:21] offset:{COPY[0] + 64}
    v_alignbit_b32 v68, v21, v20, 16
    v_alignbit_b32 v69, v22, v21, 16
    ds_write_b64 v48, v[68:69] offset:{COPY[1] + 64}
    v_mov_b32 v70, v21
    v_mov_b32 v71, v22
    ds_write_b64 v48, v[70:71] offset:{COPY[2] + 64}
    v_mov_b32 v72, v69
    v_alignbit_b32 v73, v23, v22, 16
    ds_write_b64 v48, v[72:73] offset:{COPY[3] + 64}
    """)
    def gen(kind, dst, d0, d1):
        return {"P00": f"v_perm_b32 v{dst}, v{d0}, v{d0}, s40", "P01": f"v_mov_b32 v{dst}, v{d0}",
                "P11": f"v_perm_b32 v{dst}, v{d0}, v{d0}, s41", "P12": f"v_alignbit_b32 v{dst}, v{d1}, v{d0}, 16",
                "P22": f"v_perm_b32 v{dst}, v{d1}, v{d1}, s40", "P23": f"v_perm_b32 v{dst}, v{d1}, v{d1}, v62"}[kind]
    segs = [(24, [0, 0, 1, 2, 2, 2, 3], 2, "v48", 72 * 8),
            (26, [0, 0, 0, 1, 1, 1, 2, 2, 2, 2, 2], 4, "v49", 136 * 8),
            (28, [0] * 5 + [1] * 7 + [2] * 7, 8, "v50", 264 * 8)]
    tmp = [68]
    for d0, e, nd, adr, off in segs:
        cache = {}
        for c in range(4):
            dw = [f"P{e[c+2*i]}{e[c+2*i+1]}" for i in range(nd)]
            step = min(nd, 4)
            for h in range(0, nd, step):
                key = tuple(dw[h:h+step])
                if key not in cache:
                    t = tmp[0]; tmp[0] = 68 + (t - 68 + 4) % 24
                    cache = {k: v for k, v in cache.items() if v != t}
                    for i, k in enumerate(key): a(gen(k, t + i, d0, d0 + 1))
                    cache[key] = t
                t = cache[key]
                a(f"ds_write_b{32*step} {adr}, {vr(t,step)} offset:{COPY[c] + off + 4*h}")
    a.stamp(3)
    a(f"""
    v_add_f32 v66, 1.0, v66
    """)
    bf16_round(a, "v66", "v66")
    a(f"""
    s_mov_b32 s48, {fbits(24.0)}
    v_fma_f32 v67, |v66|, s48, |v65|
    v_frexp_exp_i32_f32 v67, v67
    v_sub_u32 v67, 14, v67
    v_ldexp_f32 v65, v65, v67
    v_ldexp_f32 v66, v66, v67
    v_cvt_pk_f16_f32 v65, v65, v65
    v_cvt_pk_f16_f32 v66, v66, v66
    s_lshl_b32 s39, s3, 1
    v_readlane_b32 s49, v67, s39
    """)
    for u in range(4):
        for i in range(4):
            a(f"v_pk_fma_f16 v{32+4*u+i}, v{32+4*u+i}, v66, v65")
        a(f"ds_write_b128 v57, {vr(32+4*u,4)} offset:{HIMG + 256 + 256*u}")
    a(f"""
    s_sub_u32 s49, 0, s49
    v_lshlrev_b32 v18, 16, v18
    v_mul_f32 v17, s43, v17
    v_mul_f32 v18, s43, v18
    v_ldexp_f32 v17, v17, s49
    v_ldexp_f32 v18, v18, s49
    v_and_b32 v3, 3, v13
    v_add_u32 v3, 1, v3
    v_lshrrev_b32 v4, 2, v3
    v_and_b32 v3, 3, v3
    v_cmp_eq_u32 vcc, 1, v3
    v_mov_b32 v6, {COPY[1]}
    v_cndmask_b32 v6, 0, v6, vcc
    v_cmp_eq_u32 vcc, 2, v3
    v_mov_b32 v7, {COPY[2]}
    v_cndmask_b32 v6, v6, v7, vcc
    v_cmp_eq_u32 vcc, 3, v3
    v_mov_b32 v7, {COPY[3]}
    v_cndmask_b32 v6, v6, v7, vcc
    v_lshrrev_b32 v7, 2, v13
    v_add_u32 v7, v7, v5
    v_lshl_add_u32 v7, v7, 1, v4
    v_lshl_add_u32 v6, v7, 3, v6
    v_add_u32 v6, s37, v6
    v_sub_u32 v7, 3, v5
    v_mul_u32_u24 v7, 1280, v7
    v_lshl_add_u32 v7, v13, 4, v7
    v_add_u32 v7, s37, v7
    s_waitcnt lgkmcnt(0)
    s_barrier
    """)
    a.stamp(4)
    ACC = 112
    def bufs(dp):
        b = 144 + 40 * (dp & 1)
        return [b + 6 * v for v in range(4)], [b + 24 + 4 * u for u in range(4)]
    def reads(dp):
        A, W = bufs(dp)
        rw = lambda u: f"ds_read_b128 {vr(W[u],4)}, v7 offset:{HIMG + 16 + (16*u - dp + 15) * 16}"
        ra = lambda v: [f"ds_read_b64 {vr(A[v]+2*m,2)}, v6 offset:{64*(dp + 16*v) + 8*m}" for m in range(3)]
        return [rw(0)] + ra(0) + [rw(1), rw(2), rw(3)] + ra(1) + ra(2) + ra(3)
    for x in reads(0): a(x)
    for dp in range(16):
        A, W = bufs(dp)
        mf = []
        for v in range(4):
            for u in range(4 - v):
                for rt in range(2):
                    acc = vr(ACC + 8 * (u + v) + 4 * rt, 4)
                    c = "0" if (dp == 0 and v == 0) else acc
                    mf.append(f"v_mfma_f32_16x16x32_f16 {acc}, {vr(A[v]+2*rt,4)}, {vr(W[u],4)}, {c}")
        if dp < 15:
            fill = reads(dp + 1)
        else:
            fill = [f"ds_read_b128 {vr(32+4*t,4)}, v51 offset:{HIMG + 256 + 256*t}" for t in range(4)]
        for x in interleave(mf, fill, 0, 16): a(x)
    a.stamp(5)
    a(f"""
    v_mul_u32_u24 v3, {X1B}, v13
    v_lshl_add_u32 v3, v5, 4, v3
    s_lshl_b32 s6, s5, 6
    s_add_u32 s6, s6, {WS_X1T}
    """)
    for t in range(4):
        for i in range(8):
            x = 96 + 4 * t + i // 2; h = 32 + 4 * t + (7 - i) // 2
            d = 48 + i
            a(f"v_lshlrev_b32 v{d}, 16, v{x}" if i % 2 == 0 else f"v_and_b32 v{d}, 0xffff0000, v{x}")
            a(f"v_fmac_f32 v{d}, v{ACC + 8*t + i}, v17")
            a(f"v_fma_mix_f32 v{d}, v{h}, v18, v{d} op_sel:[{(7-i)&1},0,0] op_sel_hi:[1,0,0]")
        for i in range(4):
            a(f"v_cvt_pk_bf16_f32 v{56 + 4*(t&1) + i}, v{48+2*i}, v{49+2*i}")
        a(f"buffer_store_dwordx4 {vr(56 + 4*(t&1),4)}, v3, s[28:31], s6 offen{WT_SC}")
        if t < 3: a(f"s_add_u32 s6, s6, {16*X1B}")
    a.end()

def trans(a):
    ex = a.label("tr_exit")
    a(f"""
    v_lshrrev_b32 v1, 6, v0
    v_and_b32 v2, 63, v0
    v_readfirstlane_b32 s3, v1
    s_cmp_ge_u32 s3, 3
    s_cbranch_scc1 {ex}
    s_load_dwordx2 s[28:29], s[0:1], {ARG['ws']}
    s_load_dwordx4 s[12:15], s[0:1], {ARG['w1']}
    s_load_dwordx4 s[16:19], s[0:1], {ARG['w3']}
    s_mov_b32 s30, {SIZE['ws']}
    s_mov_b32 s31, 0x20000
    s_sub_u32 s4, s2, {N_CONV}
    s_mul_i32 s4, s4, 3
    s_add_u32 s4, s4, s3
    s_and_b32 s5, s4, 1
    s_lshr_b32 s4, s4, 1
    s_mul_hi_u32 s6, s4, {(2**32 + 8)//9}
    s_mul_i32 s7, s6, 9
    s_sub_u32 s7, s4, s7
    s_sub_u32 s32, s6, 8
    s_mul_i32 s32, s32, {576*1152}
    s_mov_b32 s10, {SIZE['w1']}
    s_mov_b32 s34, 1152
    s_waitcnt lgkmcnt(0)
    s_cmp_eq_u32 s6, 16
    s_cselect_b32 s8, s12, s14
    s_cselect_b32 s9, s13, s15
    s_cmp_lt_u32 s6, 16
    s_cselect_b32 s8, s18, s8
    s_cselect_b32 s9, s19, s9
    s_cselect_b32 s10, {SIZE['w4']}, s10
    s_cselect_b32 s32, s32, 0
    s_mul_i32 s33, s6, 1152
    s_cmp_lt_u32 s6, 8
    s_cselect_b32 s8, s16, s8
    s_cselect_b32 s9, s17, s9
    s_cselect_b32 s32, s33, s32
    s_cselect_b32 s33, 9216, s34
    s_mov_b32 s11, 0x20000
    s_lshl_b32 s34, s7, 7
    s_add_u32 s32, s32, s34
    s_mul_i32 s34, s33, 288
    s_mul_i32 s34, s34, s5
    s_add_u32 s32, s32, s34
    s_lshl_b32 s34, s33, 3
    v_lshrrev_b32 v3, 3, v2
    v_mul_lo_u32 v3, v3, s33
    v_and_b32 v4, 7, v2
    v_lshl_add_u32 v3, v4, 4, v3
    s_mul_i32 s35, s3, 36864
    s_mov_b32 m0, s35
    """)
    for i in range(36):
        a("buffer_load_dwordx4 v3, s[8:11], s32 offen lds")
        if i < 35: a("s_add_u32 m0, m0, 1024\ns_add_u32 s32, s32, s34")
    a(f"""
    v_lshrrev_b32 v4, 4, v2
    v_bfe_u32 v5, v2, 2, 2
    v_lshl_add_u32 v5, v4, 3, v5
    v_and_b32 v6, 3, v2
    v_lshlrev_b32 v5, 7, v5
    v_lshl_add_u32 v5, v6, 4, v5
    v_add_u32 v5, s35, v5
    v_lshlrev_b32 v7, 4, v2
    s_cmp_ge_u32 s6, 16
    s_mov_b32 s41, 1024
    s_cselect_b32 s41, 18432, s41
    s_cselect_b32 s42, 1024, s34
    s_lshr_b32 s43, s6, 3
    s_cmp_eq_u32 s43, 0
    s_cselect_b32 s42, 3072, s42
    s_mul_i32 s36, s6, {WBLK}
    s_mul_i32 s37, s5, 9
    s_mul_i32 s37, s37, s42
    s_add_u32 s36, s36, s37
    s_add_u32 s36, s36, {WS_WT}
    s_mov_b32 s38, 0x3f803f80
    """)
    for t in range(4):
        a(f"""
        s_lshl_b32 s44, s7, 2
        s_add_u32 s44, s44, {t}
        s_mul_i32 s45, s44, 43
        s_lshr_b32 s45, s45, 7
        s_mul_i32 s46, s44, 57
        s_lshr_b32 s46, s46, 9
        s_cmp_eq_u32 s43, 1
        s_cselect_b32 s45, s46, s45
        s_cselect_b32 s46, 9, 3
        s_mul_i32 s47, s45, s46
        s_sub_u32 s44, s44, s47
        s_sub_u32 s48, s46, 1
        s_cmp_eq_u32 s44, 0
        s_cselect_b32 s48, s46, s44
        s_sub_u32 s48, s48, 1
        s_bitcmp1_b32 s45, 0
        s_cselect_b32 s44, s48, s44
        s_mul_i32 s47, s47, 18432
        s_mul_i32 s44, s44, s41
        s_add_u32 s44, s44, s47
        v_add_u32 v{8+t}, s44, v7
        """)
    for t in range(4): a(f"v_mov_b32 v{12+t}, 0")
    for u in range(9):
        b = 16 + 16 * (u & 1)
        a("s_waitcnt vmcnt(32)")
        a.stamp(1 + u)
        for t in range(4):
            for h in range(2):
                a(f"ds_read_b64_tr_b16 {vr(b+4*t+2*h,2)}, v5 offset:{u*4096 + h*512 + (t>>1)*64 + (t&1)*8}")
        for t in range(4):
            a(f"buffer_store_dwordx4 {vr(b+4*t,4)}, v{8+t}, s[28:31], s36 offen{WT_SC}")
        for i in range(4):
            for t in range(4):
                a(f"v_dot2c_f32_bf16 v{12+t}, s38, v{b+4*t+i}")
        a("s_add_u32 s36, s36, s42")
    a(f"""
    s_cmp_eq_u32 s6, 17
    s_cbranch_scc1 {ex}2
    s_cmp_ge_u32 s6, 8
    s_cselect_b32 s39, 1, 0
    s_cmp_lt_u32 s6, 16
    s_cselect_b32 s40, s39, 0
    s_cmp_eq_u32 s40, 1
    s_cbranch_scc1 {ex}2
    """)
    for t in range(4): group_allreduce(a, f"v{12+t}", "v48")
    a(f"""
    v_cmp_eq_u32 vcc, 1, v4
    v_cndmask_b32 v12, v12, v13, vcc
    v_cmp_eq_u32 vcc, 2, v4
    v_cndmask_b32 v12, v12, v14, vcc
    v_cmp_eq_u32 vcc, 3, v4
    v_cndmask_b32 v12, v12, v15, vcc
    v_bfe_u32 v5, v2, 2, 2
    v_lshlrev_b32 v5, 3, v5
    v_add_u32 v5, v5, v6
    v_bfe_u32 v6, v2, 4, 1
    v_lshl_add_u32 v5, v6, 2, v5
    v_bfe_u32 v6, v2, 5, 1
    v_lshl_add_u32 v5, v6, 5, v5
    v_lshlrev_b32 v5, 2, v5
    s_mul_i32 s36, s6, {576*4}
    s_mul_i32 s37, s5, {4608*4}
    s_add_u32 s36, s36, s37
    s_add_u32 s36, s36, {WS_CS3}
    s_mul_i32 s37, s5, {576*4}
    s_add_u32 s37, s37, {WS_CS1}
    s_cmp_eq_u32 s6, 16
    s_cselect_b32 s36, s37, s36
    s_lshl_b32 s37, s7, 8
    s_add_u32 s36, s36, s37
    buffer_store_dword v12, v5, s[28:31], s36 offen
    {ex}2:
    """)
    a.end()
    a(f"{ex}:\ns_endpgm")

def modf(a):
    load_srds(a, [("ws", 28)])
    a(f"""
    v_lshlrev_b32 v1, 4, v0
    v_mov_b32 v2, {OOB}
    v_cmp_gt_u32 vcc, 144, v0
    v_cndmask_b32 v1, v2, v1, vcc
    s_waitcnt lgkmcnt(0)
    """)
    for w in range(3):
        for k in range(4):
            a(f"s_mov_b32 s4, {WS_MODP + k*13824 + (3+w)*2304}")
            a(f"buffer_load_dwordx4 {vr(8+16*w+4*k,4)}, v1, s[28:31], s4 offen")
    for w in range(3):
        b = 8 + 16 * w
        for i in range(4):
            a(f"v_add_f32 v{b+i}, v{b+i}, v{b+4+i}\nv_add_f32 v{b+8+i}, v{b+8+i}, v{b+12+i}\nv_add_f32 v{b+i}, v{b+i}, v{b+8+i}")
            bf16_round(a, f"v{b+i}", f"v{b+i}")
            if w == 1:
                a(f"v_add_f32 v{b+i}, 1.0, v{b+i}")
                bf16_round(a, f"v{b+i}", f"v{b+i}")
        a(f"s_mov_b32 s4, {WS_MODF + w*2304}")
        a(f"buffer_store_dwordx4 {vr(b,4)}, v1, s[28:31], s4 offen")
    a.end()

def k1(a, name="k1_kernel"):
    a.kernel(name, N_CONV + N_TRANS + 1, 256, LDS1, 224, sgpr=56)
    a(f"""
    s_cmp_gt_u32 s2, {N_CONV + N_TRANS}
    s_cbranch_scc1 k1_exit
    """)
    a.diag_init()
    a(f"""
    s_cmp_eq_u32 s2, {N_CONV + N_TRANS}
    s_cbranch_scc1 k1_modf
    s_cmp_ge_u32 s2, {N_CONV}
    s_cbranch_scc1 k1_trans
    """)
    conv(a)
    a("k1_trans:"); trans(a)
    a("k1_modf:"); modf(a)
    a("k1_exit:\ns_endpgm")

if __name__ == "__main__":
    a = Asm(); k1(a); open("k1_tmp.s", "w").write(a.text()); print(a.stats)
```

```python
from common import *

def decode(a):
    a("""
    v_lshrrev_b32 v1, 6, v0
    v_and_b32 v2, 63, v0
    v_readfirstlane_b32 s3, v1
    s_and_b32 s5, s2, 7
    s_lshl_b32 s5, s5, 3
    s_lshr_b32 s6, s2, 5
    s_add_u32 s5, s5, s6
    s_lshl_b32 s5, s5, 1
    s_bfe_u32 s4, s2, 0x20003
    v_lshrrev_b32 v5, 4, v2
    v_and_b32 v13, 15, v2
    v_lshlrev_b32 v6, 4, v2
    """)

def w_loads(a, blk):
    a(f"""
    s_mul_i32 s6, s4, 3
    s_add_u32 s6, s6, s3
    s_mul_i32 s7, s6, 55296
    s_add_u32 s7, s7, {WS_WT + blk * WBLK}
    """)
    for f in range(54):
        a(f"buffer_load_dwordx4 {ar(4*f,4)}, v6, s[28:31], s7 offen offset:{(f%4)*1024}")
        if f % 4 == 3: a("s_add_u32 s7, s7, 4096")

def out_offsets(a):
    a("""
    s_mul_i32 s41, s6, 3
    s_add_u32 s40, s41, 1
    s_lshr_b32 s40, s40, 1
    s_lshl_b32 s40, s40, 10
    s_and_b32 s42, s6, 1
    s_add_u32 s43, s41, 2
    s_cmp_eq_u32 s42, 1
    s_cselect_b32 s41, s41, s43
    s_lshr_b32 s41, s41, 1
    s_lshl_b32 s41, s41, 10
    s_lshl_b32 s42, s42, 3
    s_add_u32 s41, s41, s42
    s_mul_i32 s43, s5, 18432
    """)

HF, CST, ST2, ST3 = 36864, 73728, 78848, 79360
LDS2 = 79872

def k2_path(a, gemm):
    X, CS, TMP = 16, 52, 196
    a(f"""
    v_lshrrev_b32 v3, 2, v2
    v_mul_u32_u24 v3, {X1P}, v3
    v_and_b32 v4, 3, v2
    v_lshrrev_b32 v7, 5, v2
    v_lshlrev_b32 v7, 1, v7
    v_xor_b32 v4, v4, v7
    v_lshl_add_u32 v3, v4, 4, v3
    s_mul_i32 s6, s3, {9*16*X1P}
    s_lshl_b32 s7, s5, 5
    s_add_u32 s6, s6, s7
    s_add_u32 s6, s6, {WS_X1T}
    s_mul_i32 s7, s3, 9216
    s_mov_b32 m0, s7
    s_lshl_b32 s32, s3, 10
    s_add_u32 s33, s32, {WS_MODF}
    s_add_u32 s32, s32, {CST}
    s_waitcnt lgkmcnt(0)
    """)
    a.stamp(1)
    for i in range(9):
        a("buffer_load_dwordx4 v3, s[28:31], s6 offen lds")
        a(f"s_add_u32 m0, m0, 1024\ns_add_u32 s6, s6, {16*X1P}" if i < 8 else "s_mov_b32 m0, s32\ns_nop 0")
    a("buffer_load_dwordx4 v6, s[28:31], s33 offen lds")
    late = opt('wlate', 0)
    if gemm:
        if not late: w_loads(a, 16)
    else:
        a(f"s_mov_b32 m0, {CST + 4096}\ns_mov_b32 s33, {WS_MODF + 4096}\nbuffer_load_dwordx4 v6, s[28:31], s33 offen lds")
    a(f"""
    s_and_b32 s34, s3, 1
    s_lshr_b32 s35, s3, 1
    v_bfe_u32 v3, v2, 2, 2
    v_lshl_add_u32 v3, v5, 3, v3
    v_lshlrev_b32 v3, 6, v3
    v_bfe_u32 v4, v2, 1, 1
    s_lshl_b32 s36, s34, 1
    v_add_u32 v4, s36, v4
    v_and_b32 v7, 1, v5
    v_lshlrev_b32 v7, 1, v7
    v_xor_b32 v4, v4, v7
    v_lshl_add_u32 v3, v4, 4, v3
    v_and_b32 v4, 1, v2
    v_lshl_add_u32 v3, v4, 3, v3
    s_mul_i32 s36, s35, {9*2048}
    v_add_u32 v3, s36, v3
    s_mul_i32 s36, s35, {9*128}
    s_add_u32 s36, s36, {CST}
    v_lshl_add_u32 v4, v5, 5, s36
    s_lshl_b32 s36, s3, 7
    s_add_u32 s36, s36, {ST2}
    v_lshl_add_u32 v7, v13, 3, s36
    v_xor_b32 v8, 256, v7
    s_mul_i32 s36, s34, 18
    s_mul_i32 s37, s35, 9
    s_add_u32 s36, s36, s37
    s_lshl_b32 s36, s36, 10
    v_add_u32 v9, s36, v6
    s_mul_i32 s37, s5, 18432
    s_add_u32 s36, s36, s37
    s_add_u32 s37, s36, {WS_HBF}
    s_add_u32 s36, s36, {WS_X1F}
    s_mov_b64 s[24:25], s[28:29]
    s_cmp_eq_u32 s3, s4
    s_cselect_b32 s26, s30, 0
    s_mov_b32 s27, 0x20000
    s_mov_b32 s38, 0x3f803f80
    s_waitcnt vmcnt({54 if gemm and not late else 0})
    s_barrier
    """)
    if gemm and late: w_loads(a, 16)
    a.stamp(2)
    for u in range(9):
        for h in range(2):
            a(f"ds_read_b64_tr_b16 {vr(X+4*u+2*h,2)}, v3 offset:{u*2048 + h*256}")
    a("v_mov_b32 v10, 0\nv_mov_b32 v11, 0\nv_mov_b32 v14, 0\nv_mov_b32 v15, 0")
    def const_reads(u):
        return [f"ds_read_b128 {vr(CS+16*u+8*k+4*h,4)}, v4 offset:{k*2304 + u*128 + h*16}" for k in range(2) for h in range(2)]
    for u in range(9):
        for i in range(4):
            r = X + 4*u + i
            a(f"v_dot2c_f32_bf16 v{10 + 4*(i&1)}, s38, v{r}\nv_dot2c_f32_bf16 v{11 + 4*(i&1)}, v{r}, v{r}")
        if u >= 2:
            for x in const_reads(u - 2): a(x)
    def stats_finish(off):
        a("v_add_f32 v10, v10, v14\nv_add_f32 v11, v11, v15")
        group_allreduce(a, "v10", "v14"); group_allreduce(a, "v11", "v15")
        a(f"ds_write_b64 v7, v[10:11] offset:{off - ST2}")
    stats_finish(ST2)
    for u in range(9):
        a(f"buffer_store_dwordx4 {vr(X+4*u,4)}, v6, s[24:27], s36 offen offset:{(u%4)*1024}{WT_SC}")
        if u % 4 == 3: a("s_add_u32 s36, s36, 4096")
    a("s_waitcnt lgkmcnt(0)\ns_barrier")
    a.stamp(3)
    a("ds_read_b64 v[14:15], v8")
    for u in (7, 8):
        for x in const_reads(u): a(x)
    a("v_add_f32 v10, v10, v14\nv_add_f32 v11, v11, v15")
    row_stats(a, "v10", "v11", "v14")
    a("v_rcp_f32 v11, v11\nv_mov_b32 v14, 0\nv_mov_b32 v15, 0\nv_mul_f32 v10, -v10, v11\nv_mov_b32 v12, 0\nv_mov_b32 v1, 0")
    for u in range(9):
        for i in range(4):
            r = X + 4*u + i; t = TMP + 2*(i & 1)
            S = CS + 16*u + 2*i
            a(f"v_lshlrev_b32 v{t}, 16, v{r}\nv_and_b32 v{t+1}, 0xffff0000, v{r}")
            a(f"v_pk_fma_f32 {vr(t,2)}, {vr(t,2)}, v[10:11], v[10:11] op_sel:[0,1,0] op_sel_hi:[1,1,0]")
            a(f"v_pk_fma_f32 {vr(t,2)}, {vr(t,2)}, {vr(S+8,2)}, {vr(S,2)}")
            a(f"v_cvt_pk_bf16_f32 v{r}, v{t}, v{t+1}")
        a(f"ds_write_b128 v9, {vr(X+4*u,4)} offset:{HF + u*1024}")
        a(f"buffer_store_dwordx4 {vr(X+4*u,4)}, v6, s[24:27], s37 offen offset:{(u%4)*1024}{WT_SC}")
        if u % 4 == 3: a("s_add_u32 s37, s37, 4096")
        for i in range(4):
            r = X + 4*u + i
            a(f"v_dot2c_f32_bf16 {'v12' if i&1 else 'v14'}, s38, v{r}\nv_dot2c_f32_bf16 {'v1' if i&1 else 'v15'}, v{r}, v{r}")
    a.stamp(4)
    a("v_add_f32 v10, v12, v14\nv_add_f32 v11, v1, v15")
    group_allreduce(a, "v10", "v14"); group_allreduce(a, "v11", "v15")
    a(f"ds_write_b64 v7, v[10:11] offset:{ST3 - ST2}")
    if not gemm:
        a("s_waitcnt lgkmcnt(0)\ns_barrier"); a.end()
        return
    out_offsets(a)
    a(f"""
    v_lshlrev_b32 v3, 5, v5
    s_lshr_b32 s44, s40, 3
    s_add_u32 s44, s44, {WS_CS1}
    s_lshr_b32 s45, s41, 10
    s_lshl_b32 s45, s45, 7
    s_lshl_b32 s42, s42, 1
    s_add_u32 s45, s45, s42
    s_add_u32 s45, s45, {WS_CS1}
    """)
    for h in range(2):
        a(f"buffer_load_dwordx4 {vr(200+12*h,4)}, v3, s[28:31], s44 offen offset:{2304*h}")
        a(f"buffer_load_dwordx4 {vr(204+12*h,4)}, v3, s[28:31], s44 offen offset:{2304*h+16}")
        a(f"buffer_load_dwordx4 {vr(208+12*h,4)}, v3, s[28:31], s45 offen offset:{2304*h}")
    a(f"v_lshlrev_b32 v7, 3, v13\nv_add_u32 v7, {ST3}, v7\nv_add_u32 v8, {HF}, v6\ns_add_u32 s40, s40, s43\ns_add_u32 s41, s41, s43\ns_add_u32 s40, s40, {WS_TF}\ns_add_u32 s41, s41, {WS_TF}")
    a("s_waitcnt lgkmcnt(0)\ns_barrier")
    a.stamp(5)
    B = 52; ACC = 16; GC = 224
    for w in range(4):
        a(f"ds_read_b64 {vr(40+2*w,2)}, v7 offset:{128*w}")
    rd = [f"ds_read_b128 {vr(B+8*ks+4*tt,4)}, v8 offset:{(18*tt+ks)*1024}" for ks in range(18) for tt in range(2)]
    for x in rd[:8]: a(x)
    for tt in range(2):
        m, sd = f"v{GC+4*tt}", f"v{GC+4*tt+1}"
        a(f"v_add_f32 {m}, v{40+2*tt}, v{44+2*tt}\nv_add_f32 {sd}, v{41+2*tt}, v{45+2*tt}")
        row_stats(a, m, sd, "v48")
        gelu_consts(a, m, sd, f"v{GC+4*tt+2}", f"v{GC+4*tt+3}")
    def mf(t):
        return [f"v_mfma_f32_16x16x32_bf16 {vr(ACC+8*t+4*tt,4)}, {ar(4*(18*t+ks),4)}, {vr(B+8*ks+4*tt,4)}, {vr(ACC+8*t+4*tt,4) if ks else '0'}"
                for ks in range(18) for tt in range(2)]
    def epi(t):
        o = []
        for tt in range(2):
            g = GC + 4*tt
            out = 232 + 4*tt + 2*t if t < 2 else 240 + 2*tt
            o += gelu_tile(ACC+8*t+4*tt, 200+4*t, g, g+1, g+2, g+3, 244 + 4*tt, out)
            if t == 1: o.append(f"buffer_store_dwordx4 {vr(232+4*tt,4)}, v6, s[28:31], s40 offen{WT_SC}" + ("\ns_add_u32 s40, s40, 18432" if tt == 0 else ""))
            if t == 2: o.append(f"buffer_store_dwordx2 {vr(240+2*tt,2)}, v6, s[28:31], s41 offen{WT_SC}" + ("\ns_add_u32 s41, s41, 18432" if tt == 0 else ""))
        return o
    adds = [f"v_add_f32 v{200+i}, v{200+i}, v{212+i}" for i in range(12)]
    for x in interleave(mf(0), rd[8:] + adds, 0, 34): a(x)
    a.stamp(6)
    for x in interleave(mf(1), epi(0), 4): a(x)
    a.stamp(7)
    for x in interleave(mf(2), epi(1), 4): a(x)
    a.stamp(8)
    for x in epi(2): a(x)
    a.end()

def k2(a, name="k2_kernel"):
    a.kernel(name, 256, 256, LDS2, 252, agpr=216, sgpr=56)
    a("s_cmp_ge_u32 s2, 256\ns_cbranch_scc1 k2_exit"); a.diag_init()
    load_srds(a, [("ws", 28)])
    decode(a)
    a("s_cmp_eq_u32 s3, 3\ns_cbranch_scc1 k2_helper")
    k2_path(a, True)
    a("k2_helper:"); k2_path(a, False)
    a("k2_exit:\ns_endpgm")

LDS3 = 36864
def k3_path(a, gemm):
    a(f"""
    s_and_b32 s34, s3, 1
    s_lshr_b32 s35, s3, 1
    s_add_u32 s36, s5, s34
    s_lshl_b32 s36, s36, 4
    s_add_u32 s37, s35, 1
    v_add_u32 v3, s36, v13
    v_subrev_u32 v7, s37, v3
    v_add_u32 v8, s37, v3
    v_mov_b32 v9, {OOB}
    """)
    for v in ("v7", "v8"):
        a(f"""
        v_lshrrev_b32 v10, 4, {v}
        v_mul_u32_u24 v10, 18432, v10
        v_and_b32 v11, 15, {v}
        v_lshl_add_u32 v10, v11, 4, v10
        v_lshl_add_u32 v10, v5, 8, v10
        v_cmp_gt_u32 vcc, 2048, {v}
        v_cndmask_b32 {v}, v9, v10, vcc
        """)
    a(f"""
    v_cmp_gt_u32 vcc, 2, v5
    v_cndmask_b32 v9, v8, v7, vcc
    s_mul_i32 s36, s35, 9216
    s_mul_i32 s37, s34, 18432
    s_add_u32 s37, s37, s36
    s_add_u32 s36, s36, {WS_TF}
    s_mov_b32 m0, s37
    s_waitcnt lgkmcnt(0)
    """)
    a.stamp(1)
    for u in range(9):
        a(f"buffer_load_dwordx4 {'v7' if u < 4 else 'v9' if u == 4 else 'v8'}, s[28:31], s36 offen lds")
        if u < 8: a("s_add_u32 m0, m0, 1024\ns_add_u32 s36, s36, 1024")
    if not gemm:
        a("s_waitcnt vmcnt(0)\ns_barrier"); a.end()
        return
    late = opt('wlate', 0)
    a.stamp(9)
    if late:
        a("s_waitcnt vmcnt(0)"); a.stamp(10); a("s_barrier")
    w_loads(a, 17)
    a.stamp(11)
    out_offsets(a)
    a(f"""
    s_add_u32 s40, s40, s43
    s_add_u32 s41, s41, s43
    s_add_u32 s44, s40, {WS_HBF}
    s_add_u32 s45, s41, {WS_HBF}
    s_add_u32 s40, s40, {WS_XBF}
    s_add_u32 s41, s41, {WS_XBF}
    s_mov_b32 s38, 0x3f803f80
    """)
    if not late:
        a("s_waitcnt vmcnt(54)"); a.stamp(12); a("s_barrier")
    a.stamp(2)
    B = 52; ACC = 16; HB = 200
    for tt in range(2):
        a(f"buffer_load_dwordx4 {vr(HB+4*tt,4)}, v6, s[28:31], s44 offen")
        a(f"buffer_load_dwordx2 {vr(HB+8+2*tt,2)}, v6, s[28:31], s45 offen")
        if tt == 0: a("s_add_u32 s44, s44, 18432\ns_add_u32 s45, s45, 18432")
    rd = [f"ds_read_b128 {vr(B+8*ks+4*tt,4)}, v6 offset:{(18*tt+ks)*1024}" for ks in range(18) for tt in range(2)]
    for x in rd[:8]: a(x)
    for i in range(4): a(f"v_mov_b32 v{40+i}, 0")
    def mf(t):
        return [f"v_mfma_f32_16x16x32_bf16 {vr(ACC+8*t+4*tt,4)}, {ar(4*(18*t+ks),4)}, {vr(B+8*ks+4*tt,4)}, {vr(ACC+8*t+4*tt,4) if ks else '0'}"
                for ks in range(18) for tt in range(2)]
    def epi(t):
        o = []
        for tt in range(2):
            hb = HB + 4*tt + 2*t if t < 2 else HB + 8 + 2*tt
            acc = ACC + 8*t + 4*tt; tm = 216 + 4*tt
            for i in range(2):
                o += [f"v_lshlrev_b32 v{tm+2*i}, 16, v{hb+i}", f"v_and_b32 v{tm+2*i+1}, 0xffff0000, v{hb+i}"]
            o += [f"v_add_f32 v{tm+i}, v{tm+i}, v{acc+i}" for i in range(4)]
            o += [f"v_cvt_pk_bf16_f32 v{hb+i}, v{tm+2*i}, v{tm+2*i+1}" for i in range(2)]
            if t == 1: o.append(f"buffer_store_dwordx4 {vr(HB+4*tt,4)}, v6, s[28:31], s40 offen{WT_SC}" + ("\ns_add_u32 s40, s40, 18432" if tt == 0 else ""))
            if t == 2: o.append(f"buffer_store_dwordx2 {vr(HB+8+2*tt,2)}, v6, s[28:31], s41 offen{WT_SC}" + ("\ns_add_u32 s41, s41, 18432" if tt == 0 else ""))
            for i in range(2):
                o += [f"v_dot2c_f32_bf16 v{40+2*tt}, s38, v{hb+i}", f"v_dot2c_f32_bf16 v{41+2*tt}, v{hb+i}, v{hb+i}"]
        return o
    for x in interleave(mf(0), rd[8:], 0, 28): a(x)
    a.stamp(3)
    for x in interleave(mf(1), epi(0), 6): a(x)
    a.stamp(4)
    for x in interleave(mf(2), epi(1), 6): a(x)
    a(f"""
    v_mul_u32_u24 v3, 96, v13
    v_and_b32 v4, 1, v5
    v_mul_u32_u24 v4, {16*96}, v4
    v_add_u32 v3, v3, v4
    v_mov_b32 v4, {OOB}
    v_cmp_gt_u32 vcc, 2, v5
    v_cndmask_b32 v3, v4, v3, vcc
    s_mul_i32 s44, s5, {16*96}
    s_lshl_b32 s45, s6, 3
    s_add_u32 s44, s44, s45
    s_add_u32 s44, s44, {WS_ST4}
    """)
    a.stamp(5)
    for x in epi(2): a(x)
    for i in range(4): group_allreduce(a, f"v{40+i}", f"v{44+i}")
    a("""
    v_cmp_eq_u32 vcc, 1, v5
    v_cndmask_b32 v40, v40, v42, vcc
    v_cndmask_b32 v41, v41, v43, vcc
    buffer_store_dwordx2 v[40:41], v3, s[28:31], s44 offen
    """)
    a.end()

def k3(a, name="k3_kernel"):
    a.kernel(name, 256, 256, LDS3, 224, agpr=216, sgpr=56)
    a("s_cmp_ge_u32 s2, 256\ns_cbranch_scc1 k3_exit"); a.diag_init()
    load_srds(a, [("ws", 28)])
    decode(a)
    a("s_cmp_eq_u32 s3, 3\ns_cbranch_scc1 k3_helper")
    k3_path(a, True)
    a("k3_helper:"); k3_path(a, False)
    a("k3_exit:\ns_endpgm")

if __name__ == "__main__":
    a = Asm(); k2(a); k3(a); open("k23_tmp.s", "w").write(a.text()); print(a.stats)
```

```python
from common import *
LDS4 = 147456 + 8192
CSO = 147456
HOFF = 73728

def k4(a, name="k4_kernel", DP=opt('dp', 24), RING=30):
    ACC = 0 + 8
    BF = 152
    GC = 184
    CS = 200
    TM = 224
    PK = 232
    AG2 = 4 * RING
    a.kernel(name, 256, 256, LDS4, 240, agpr=AG2 + 96, sgpr=56)
    a("s_cmp_ge_u32 s2, 256\ns_cbranch_scc1 k4_exit"); a.diag_init()
    load_srds(a, [("ws", 28)])
    a(f"""
    v_lshrrev_b32 v1, 6, v0
    v_and_b32 v2, 63, v0
    v_readfirstlane_b32 s3, v1
    s_and_b32 s4, s2, 3
    s_lshl_b32 s4, s4, 1
    s_bfe_u32 s6, s2, 0x10003
    s_add_u32 s4, s4, s6
    s_bfe_u32 s5, s2, 0x10002
    s_lshl_b32 s5, s5, 4
    s_lshr_b32 s6, s2, 4
    s_add_u32 s5, s5, s6
    v_lshlrev_b32 v6, 4, v2
    s_lshl_b32 s6, s5, 2
    s_add_u32 s6, s6, s3
    s_mul_i32 s6, s6, 18432
    s_add_u32 s6, s6, {WS_XBF}
    s_mul_i32 s7, s3, 18432
    s_mov_b32 m0, s7
    s_mul_i32 s32, s4, {WBLK}
    s_mul_i32 s33, s3, 165888
    s_add_u32 s33, s33, s32
    s_add_u32 s33, s33, {WS_WT + 8*WBLK}
    s_mul_i32 s34, s3, 55296
    s_add_u32 s32, s32, s34
    s_add_u32 s32, s32, {WS_WT}
    v_lshrrev_b32 v5, 4, v2
    v_and_b32 v7, 15, v2
    v_mul_u32_u24 v3, 96, v7
    v_mul_u32_u24 v4, 24, v5
    v_add_u32 v3, v3, v4
    s_mul_i32 s34, s5, {64*96}
    s_add_u32 s34, s34, {WS_ST4}
    s_waitcnt lgkmcnt(0)
    """)
    a.stamp(1)
    for ks in range(18):
        a("buffer_load_dwordx4 v6, s[28:31], s6 offen lds")
        if ks < 17: a("s_add_u32 m0, m0, 1024\ns_add_u32 s6, s6, 1024")
    a(f"""
    s_lshl_b32 s6, s3, 10
    s_add_u32 m0, s6, {CSO}
    s_mul_i32 s7, s4, 2304
    s_add_u32 s6, s6, s7
    s_add_u32 s6, s6, {WS_CS3}
    buffer_load_dwordx4 v6, s[28:31], s6 offen lds
    s_add_u32 m0, m0, 4096
    s_add_u32 s6, s6, {4608*4}
    buffer_load_dwordx4 v6, s[28:31], s6 offen lds
    """)
    T = ACC + 48
    for tt in range(4):
        a(f"buffer_load_dwordx4 {vr(T+8*tt,4)}, v3, s[28:31], s34 offen")
        a(f"buffer_load_dwordx2 {vr(T+8*tt+4,2)}, v3, s[28:31], s34 offen offset:16")
        if tt < 3: a(f"s_add_u32 s34, s34, {16*96}")
    def wload(f):
        o = []
        sreg = "s32" if f < 162 else "s33"
        k = f % 54 if f < 162 else f - 162
        o.append(f"buffer_load_dwordx4 {ar(4*(f % RING),4)}, v6, s[28:31], {sreg} offen offset:{(k%4)*1024}")
        if f < 162 and k == 53: o.append(f"s_add_u32 s32, s32, {221184 - 13*4096}")
        elif k % 4 == 3: o.append(f"s_add_u32 {sreg}, {sreg}, 4096")
        return "\n".join(o)
    for f in range(DP): a(wload(f))
    a(f"""
    s_mul_i32 s35, s3, 3
    s_add_u32 s36, s35, 1
    s_lshr_b32 s36, s36, 1
    s_and_b32 s38, s3, 1
    s_add_u32 s37, s35, 2
    s_cmp_eq_u32 s38, 1
    s_cselect_b32 s37, s35, s37
    s_lshr_b32 s37, s37, 1
    s_lshl_b32 s39, s36, 12
    s_add_u32 s39, s39, {HOFF}
    v_add_u32 v0, s39, v6
    s_lshl_b32 s39, s37, 12
    s_lshl_b32 s40, s38, 3
    s_add_u32 s39, s39, s40
    s_add_u32 s39, s39, {HOFF}
    v_add_u32 v1, s39, v6
    s_lshl_b32 s36, s36, 7
    s_add_u32 s36, s36, {CSO}
    s_lshl_b32 s37, s37, 7
    s_lshl_b32 s40, s38, 4
    s_add_u32 s37, s37, s40
    s_add_u32 s37, s37, {CSO}
    v_lshl_add_u32 v4, v5, 5, s36
    v_lshl_add_u32 v7, v5, 5, s37
    v_add_u32 v2, 36864, v6
    v_add_u32 v238, {HOFF}, v6
    v_add_u32 v239, {HOFF + 36864}, v6
    s_mul_i32 s41, s3, 9
    s_add_u32 s42, s41, 1
    s_lshr_b32 s42, s42, 1
    s_lshl_b32 s42, s42, 10
    s_add_u32 s43, s41, 8
    s_cmp_eq_u32 s38, 1
    s_cselect_b32 s43, s41, s43
    s_lshr_b32 s43, s43, 1
    s_lshl_b32 s43, s43, 10
    s_lshl_b32 s40, s38, 3
    s_add_u32 s43, s43, s40
    s_mul_i32 s44, s4, {ACT}
    s_mul_i32 s45, s5, {4*18432}
    s_add_u32 s44, s44, s45
    s_add_u32 s44, s44, {WS_PART}
    s_add_u32 s42, s42, s44
    s_add_u32 s43, s43, s44
    """)
    for tt in range(1, 4):
        a(f"s_add_u32 s{47+tt}, s42, {18432*tt}\ns_add_u32 s{50+tt}, s43, {18432*tt}")
    pair_s = ["s42", "s48", "s49", "s50"]; single_s = ["s43", "s51", "s52", "s53"]
    def cs_loads(p):
        o = []
        for h in range(2):
            o += [f"ds_read_b128 {vr(CS+12*h,4)}, v4 offset:{4096*h + 768*p}",
                  f"ds_read_b128 {vr(CS+12*h+4,4)}, v4 offset:{4096*h + 768*p + 16}",
                  f"ds_read_b128 {vr(CS+12*h+8,4)}, v7 offset:{4096*h + 768*p}"]
        return o
    cs_add = [f"v_add_f32 v{CS+i}, v{CS+i}, v{CS+12+i}" for i in range(12)]
    for tt in range(4):
        b = T + 8 * tt; m, sd = f"v{GC+4*tt}", f"v{GC+4*tt+1}"
        a(f"v_add_f32 {m}, v{b}, v{b+2}\nv_add_f32 {sd}, v{b+1}, v{b+3}\nv_add_f32 {m}, {m}, v{b+4}\nv_add_f32 {sd}, {sd}, v{b+5}")
        group_allreduce(a, m, f"v{b}"); group_allreduce(a, sd, f"v{b+1}")
        row_stats(a, m, sd, f"v{b}")
        gelu_consts(a, m, sd, f"v{GC+4*tt+2}", f"v{GC+4*tt+3}")
    a.stamp(2)
    a("s_barrier")
    a.stamp(3)
    steps = []
    for p in range(3):
        for ks in range(18): steps.append((54*p + 3*ks, 3, [(18*tt + ks) * 1024 for tt in range(4)]))
    for ks in range(18): steps.append((162 + 9*ks, 9, [HOFF + (4*ks + tt) * 1024 for tt in range(4)]))
    def bread(s):
        o = []
        for tt, off in enumerate(steps[s][2]):
            q = off // 36864
            o.append(f"ds_read_b128 {vr(BF+16*(s&1)+4*tt,4)}, {['v6','v2','v238','v239'][q]} offset:{off - q*36864}")
        return o
    NG = 324
    pre = [[] for _ in range(4 * NG)]
    post = [[] for _ in range(4 * NG)]
    cost = [0] * (4 * NG)
    def place(m, txt, c=4):
        post[m].append(txt); cost[m] += c
    for f in range(NG - DP): place(4 * f, wload(f + DP))
    for s in range(len(steps) - 1):
        g0, n, _ = steps[s]
        for tt, x in enumerate(bread(s + 1)):
            place(4 * g0 + ([1, 2, 3, 5][tt] if n == 3 else 6 * tt + 7), x)
    starts = {g0 for g0, _, _ in steps}
    for f in range(0, NG, 3):
        left = min(NG, f + DP) - (f + 3)
        w = f"s_waitcnt vmcnt({left})" if f < 318 else "s_waitcnt"
        if f in starts: w += " lgkmcnt(0)"
        if w != "s_waitcnt": pre[4 * f].append(w)
    for gb in (159, 207, 261):
        pre[4 * gb].append("s_barrier")
    for p in range(3):
        for i, x in enumerate(cs_loads(p)): place(4 * ([48, 118, 187][p] + i) + 2, x)
    def gelu_pass(p):
        o = list(cs_add)
        k = 0
        for tt in range(4):
            g = GC + 4 * tt
            for t in range(3):
                o += gelu_tile(ACC + 48*p + 16*t + 4*tt, CS + 4*t, g, g+1, g+2, g+3, TM + 4*(k & 1), PK + 2*t); k += 1
                if t == 1: o.append(f"ds_write_b128 v0, {vr(PK,4)} offset:{p*6*4096 + tt*1024}")
                if t == 2: o.append(f"ds_write_b64 v1, {vr(PK+4,2)} offset:{p*6*4096 + tt*1024}")
        return o
    wt = lambda x: 8 if x.startswith(("v_exp", "v_rcp")) else 4
    for p, (lo, hi) in enumerate(((55, 117), (125, 186), (194, 260))):
        st = gelu_pass(p)
        if opt('nogelu', 0): st = [x for x in st if x.startswith(('ds_', 'v_cvt'))]
        if opt('notrans', 0): st = [x for x in st if not x.startswith(('v_exp', 'v_rcp'))]
        slots = list(range(4 * lo, 4 * hi))
        total = sum(wt(x) for x in st) + sum(cost[m] for m in slots)
        per = total / len(slots)
        acc = 0.0; i = 0
        for m in slots:
            acc += per - cost[m]
            while i < len(st) and (acc >= wt(st[i]) / 2 or m == slots[-1]):
                acc -= wt(st[i]); place(m, st[i], wt(st[i])); i += 1
    move_at = {3: 7, 4: 8, 5: 9, 6: 13, 7: 14, 8: 15}
    def acc2(t, tt, ks):
        if t < 3 or ks >= move_at[t]: return vr(ACC + 16*t + 4*tt, 4)
        return ar(AG2 + 16*(t - 3) + 4*tt, 4)
    for t, ks in move_at.items():
        g = 162 + 9 * ks + t
        mv = [f"v_accvgpr_read_b32 v{ACC + 16*t + i}, a{AG2 + 16*(t-3) + i}" for i in range(16)]
        for i, x in enumerate(mv): place(4 * (g - 6) + i + (i // 4), x)
    def epi(t):
        o = []
        for tt in range(4):
            b = ACC + 16*t + 4*tt
            if t < 8:
                d = ACC + 16*(t & ~1) + 4*tt
                o += [f"v_cvt_pk_bf16_f32 v{d + 2*(t&1) + i}, v{b+2*i}, v{b+2*i+1}" for i in range(2)]
                if t & 1: o.append(f"buffer_store_dwordx4 {vr(d,4)}, v6, s[28:31], {pair_s[tt]} offen offset:{(t>>1)*1024}{WT_SC}")
            else:
                o += [f"v_cvt_pk_bf16_f32 v{b+i}, v{b+2*i}, v{b+2*i+1}" for i in range(2)]
                o.append(f"buffer_store_dwordx2 {vr(b,2)}, v6, s[28:31], {single_s[tt]} offen{WT_SC}")
        return o
    for t in range(7):
        e = epi(t)
        for i, x in enumerate(e): place(4 * (315 + t + 2) + i * 4 // len(e), x)
    for x in bread(0): a(x)
    for s, (g0, n, _) in enumerate(steps):
        if g0 % 54 == 0 and g0: a.stamp(3 + g0 // 54)
        for j in range(n):
            f = g0 + j
            for tt in range(4):
                m = 4 * f + tt
                for x in pre[m]: a(x)
                if s < 54:
                    d = vr(ACC + 48*(s // 18) + 16*j + 4*tt, 4); first = s % 18 == 0
                else:
                    d = acc2(j, tt, s - 54); first = s == 54
                a(f"v_mfma_f32_16x16x32_bf16 {d}, {ar(4*(f % RING),4)}, {vr(BF+16*(s&1)+4*tt,4)}, {'0' if first else d}")
                for x in post[m]: a(x)
    a.stamp(9)
    for t in (7, 8):
        for x in epi(t): a(x)
    a.end()
    a("k4_exit:\ns_endpgm")

def k5(a, name="k5_kernel"):
    a.kernel(name, 576, 256, 0, 80, sgpr=48)
    a("s_cmp_ge_u32 s2, 576\ns_cbranch_scc1 k5_exit"); a.diag_init()
    load_srds(a, [("ws", 28), ("out", 8)])
    a(f"""
    v_lshrrev_b32 v1, 6, v0
    v_and_b32 v2, 63, v0
    v_readfirstlane_b32 s3, v1
    s_lshl_b32 s4, s2, 2
    s_add_u32 s4, s4, s3
    s_mul_hi_u32 s5, s4, {(2**32 + 17)//18}
    s_mul_i32 s6, s5, 18
    s_sub_u32 s6, s4, s6
    s_lshl_b32 s4, s4, 10
    v_lshlrev_b32 v6, 4, v2
    v_lshrrev_b32 v5, 4, v2
    v_lshlrev_b32 v3, 5, v5
    s_lshl_b32 s7, s6, 7
    s_add_u32 s7, s7, {WS_MODF + 2*2304}
    s_add_u32 s32, s4, {WS_PART}
    s_add_u32 s33, s4, {WS_XBF}
    s_add_u32 s34, s4, {WS_X1F}
    s_waitcnt lgkmcnt(0)
    """)
    for c in range(8):
        a(f"buffer_load_dwordx4 {vr(8+4*c,4)}, v6, s[28:31], s32 offen")
        if c < 7: a(f"s_add_u32 s32, s32, {ACT}")
    a(f"""
    buffer_load_dwordx4 v[40:43], v6, s[28:31], s33 offen
    buffer_load_dwordx4 v[44:47], v6, s[28:31], s34 offen
    buffer_load_dwordx4 v[48:51], v3, s[28:31], s7 offen
    buffer_load_dwordx4 v[52:55], v3, s[28:31], s7 offen offset:16
    v_and_b32 v7, 15, v2
    v_mul_u32_u24 v7, 1152, v7
    v_lshl_add_u32 v7, v5, 4, v7
    s_mul_i32 s5, s5, {16*1152}
    s_lshl_b32 s6, s6, 6
    s_add_u32 s5, s5, s6
    """)
    S = 56
    a.stamp(1)
    def unpack(d, r): a(f"v_lshlrev_b32 v{d}, 16, v{r}\nv_and_b32 v{d+1}, 0xffff0000, v{r}")
    for c in range(8):
        for i in range(4):
            if c == 0: unpack(S + 2*i, 8 + i)
            else:
                unpack(64 + 2*i, 8 + 4*c + i)
                a(f"v_pk_add_f32 {vr(S+2*i,2)}, {vr(S+2*i,2)}, {vr(64+2*i,2)}")
    a.stamp(2)
    def rnd(i):
        a(f"v_cvt_pk_bf16_f32 v72, v{S+2*i}, v{S+2*i+1}"); unpack(S + 2*i, 72)
    for i in range(4):
        rnd(i)
        unpack(64, 40 + i)
        a(f"v_pk_add_f32 {vr(S+2*i,2)}, {vr(S+2*i,2)}, v[64:65]")
        rnd(i)
        a(f"v_pk_mul_f32 {vr(S+2*i,2)}, {vr(S+2*i,2)}, {vr(48+2*i,2)}")
        rnd(i)
        unpack(64, 44 + i)
        a(f"v_pk_add_f32 {vr(S+2*i,2)}, {vr(S+2*i,2)}, v[64:65]")
        a(f"v_cvt_pk_bf16_f32 v{8+i}, v{S+2*i}, v{S+2*i+1}")
    a("buffer_store_dwordx4 v[8:11], v7, s[8:11], s5 offen"); a.end()
    a("k5_exit:\ns_endpgm")

if __name__ == "__main__":
    a = Asm(); k4(a); k5(a); open("k45_tmp.s", "w").write(a.text()); print(a.stats)
```

```python
from common import *
HF, HOFF = 36864, 73728
CST, ST2, ST3, DUMMY, DUMP = 73728, 78848, 79360, 79872, 81920
X1L, CSO = 147456, 156672
LDSM = 162816
CT, CX, CP = WS_CNT, WS_CNT + 64 * 128, WS_CNT + 96 * 128
SC = " sc1"
SCS = opt("scs", " sc1").replace("_", " ") if opt("scs", "1") != "0" else ""
RING, PRE = 32, 30
NX = opt('nx', 1)
AG2 = 4 * RING

SETS = {0: ['s0', 'x', 'st2', 'norm', 'b3', 'g2', 'dr2', 'h2', 't', 'dr3', 'h3', 'blk0', 'blk2', 'g4'],
        1: ['g2', 'e2', 'dr2', 'h2', 't', 'g3', 'e3', 'dr3', 'h3', 'a5', 'g4', 'dr4', 'h4', 'ld5'],
        2: ['h3', 'a5', 'blk0', 'blk1', 'blk2', 'blk3', 'blk4', 'g4', 'dr4', 'h4', 'ld5']}
def st(a, name):
    l = SETS[opt('sts', 0)]
    if name in l: a.stamp(1 + l.index(name))

def wstream(base_s, n, areg, tag):
    o = []
    for f in range(n):
        x = f"buffer_load_dwordx4 {ar(areg + 4*f,4)}, v6, s[28:31], {base_s} offen offset:{(f%4)*1024} ;@{tag}{f}"
        if f % 4 == 3: x += f"\ns_add_u32 {base_s}, {base_s}, 4096"
        o.append(x)
    return o

def signal_and_wait(a, add_s, poll_v, nlanes, target):
    lab = a.label("poll")
    a(f"""
    s_mov_b64 exec, 1
    buffer_atomic_add v244, v245, s[28:31], {add_s} offen sc1
    s_mov_b64 exec, {(1 << nlanes) - 1}
    s_mov_b32 s58, 0
    {lab}:
    buffer_load_dword v246, {poll_v}, s[28:31], 0 offen sc1
    s_add_u32 s58, s58, 1
    s_waitcnt vmcnt(0)
    v_cmp_gt_u32 vcc, {target}, v246
    s_cmp_gt_u32 s58, 0x40000
    s_cbranch_scc1 {lab}_done
    s_nop 3
    s_cbranch_vccnz {lab}
    {lab}_done:
    s_mov_b64 exec, -1
    """)

def setup(a):
    load_srds(a, [("ws", 28), ("out", 8)])
    a(f"""
    v_lshrrev_b32 v1, 6, v0
    v_and_b32 v2, 63, v0
    v_readfirstlane_b32 s3, v1
    s_and_b32 s6, s2, {(1 << NX) - 1}
    s_bfe_u32 s7, s2, {3 | (3 - NX) << 16}
    s_lshl_b32 s6, s6, {3 - NX}
    s_add_u32 s13, s6, s7
    s_bfe_u32 s6, s2, {NX | (3 - NX) << 16}
    s_lshl_b32 s6, s6, {2 + NX}
    s_lshr_b32 s12, s2, {6 - NX}
    s_add_u32 s12, s12, s6
    s_lshr_b32 s14, s13, 2
    s_and_b32 s4, s13, 3
    s_lshl_b32 s16, s12, 1
    s_add_u32 s16, s16, s14
    s_lshl_b32 s5, s16, 1
    s_mul_i32 s15, s4, 3
    s_add_u32 s15, s15, s3
    v_lshrrev_b32 v5, 4, v2
    v_and_b32 v13, 15, v2
    v_lshlrev_b32 v6, 4, v2
    s_and_b32 s34, s3, 1
    s_lshr_b32 s35, s3, 1
    """)

def out_offsets(a):
    a("""
    s_mul_i32 s41, s15, 3
    s_add_u32 s40, s41, 1
    s_lshr_b32 s40, s40, 1
    s_lshl_b32 s40, s40, 10
    s_and_b32 s42, s15, 1
    s_add_u32 s43, s41, 2
    s_cmp_eq_u32 s42, 1
    s_cselect_b32 s41, s41, s43
    s_lshr_b32 s41, s41, 1
    s_lshl_b32 s41, s41, 10
    s_lshl_b32 s42, s42, 3
    s_add_u32 s41, s41, s42
    s_mul_i32 s43, s5, 18432
    """)

def stats_out(a, off):
    a(f"""
    v_cndmask_b32 v204, v204, v205, s[46:47]
    v_cndmask_b32 v204, v204, v206, s[48:49]
    v_cndmask_b32 v204, v204, v207, s[50:51]
    ds_write_b32 v7, v200 offset:{off - ST2}
    ds_write_b32 v12, v204 offset:{off - ST2}
    """)

def small_gemm(B, ACC):
    return [f"v_mfma_f32_16x16x32_bf16 {vr(ACC+8*t+4*tt,4)}, {ar(4*(18*t+ks),4)}, {vr(B+8*ks+4*tt,4)}, {vr(ACC+8*t+4*tt,4) if ks else '0'}"
            for t in range(3) for ks in range(18) for tt in range(2)]

def phase2(a, gemm):
    X, CS, TMP, ONE = 16, 52, 208, 196
    a(f"""
    v_and_b32 v7, 32, v2
    v_xor_b32 v3, v6, v7
    s_mul_i32 s6, s16, {X1B}
    s_mul_i32 s7, s3, 9216
    s_add_u32 s6, s6, s7
    s_add_u32 s6, s6, {WS_X1T}
    s_mov_b32 m0, s7
    s_lshl_b32 s32, s3, 10
    s_add_u32 s33, s32, {WS_MODF}
    s_add_u32 s32, s32, {CST}
    s_mul_i32 s17, s15, 55296
    s_add_u32 s18, s17, {WS_WT + 17 * WBLK}
    s_add_u32 s17, s17, {WS_WT + 16 * WBLK}
    s_waitcnt lgkmcnt(0)
    """)
    st(a, 's0')
    for i in range(9):
        a("buffer_load_dwordx4 v3, s[28:31], s6 offen lds")
        a(f"s_add_u32 m0, m0, 1024\ns_add_u32 s6, s6, 1024" if i < 8 else "s_mov_b32 m0, s32\ns_nop 0")
    a("buffer_load_dwordx4 v6, s[28:31], s33 offen lds ;@x")
    w1 = wstream("s17", 54, 0, "w1_") if gemm else [""] * 54
    if not gemm:
        a(f"s_mov_b32 m0, {CST + 4096}\ns_mov_b32 s33, {WS_MODF + 4096}\nbuffer_load_dwordx4 v6, s[28:31], s33 offen lds ;@x")
    for x in w1[:4]: a(x)
    a(f"""
    v_bfe_u32 v3, v2, 2, 2
    v_lshl_add_u32 v3, v5, 3, v3
    v_lshlrev_b32 v3, 6, v3
    v_bfe_u32 v4, v2, 1, 1
    s_lshl_b32 s36, s34, 1
    v_add_u32 v4, s36, v4
    v_and_b32 v7, 1, v5
    v_lshlrev_b32 v7, 1, v7
    v_xor_b32 v4, v4, v7
    v_lshl_add_u32 v3, v4, 4, v3
    v_and_b32 v4, 1, v2
    v_lshl_add_u32 v3, v4, 3, v3
    s_mul_i32 s36, s35, {9*2048}
    v_add_u32 v3, s36, v3
    s_mul_i32 s36, s35, {9*128}
    s_add_u32 s36, s36, {CST}
    v_lshl_add_u32 v4, v5, 5, s36
    s_lshl_b32 s36, s3, 7
    s_add_u32 s36, s36, {ST2}
    v_lshl_add_u32 v7, v13, 3, s36
    v_xor_b32 v8, 256, v7
    v_add_u32 v12, 4, v7
    v_mov_b32 v10, {DUMMY}
    v_lshrrev_b32 v11, 2, v13
    v_cmp_eq_u32 vcc, v11, v5
    v_cndmask_b32 v12, v10, v12, vcc
    v_and_b32 v11, 3, v13
    v_cmp_eq_u32 s[46:47], 1, v11
    v_cmp_eq_u32 s[48:49], 2, v11
    v_cmp_eq_u32 s[50:51], 3, v11
    s_mul_i32 s36, s34, 18
    s_mul_i32 s37, s35, 9
    s_add_u32 s36, s36, s37
    s_lshl_b32 s36, s36, 10
    s_add_u32 s36, s36, {HF}
    v_add_u32 v9, s36, v6
    s_mov_b32 s37, {DUMP}
    s_cmp_eq_u32 s3, s4
    s_cselect_b32 s37, {X1L}, s37
    v_add_u32 v1, s37, v6
    """)
    for i in range(4): a(f"v_mov_b32 v{ONE+i}, 0x3f803f80")
    a("@wait_vm x\ns_barrier")
    st(a, 'x')
    for u in range(9):
        for h in range(2):
            a(f"ds_read_b64_tr_b16 {vr(X+4*u+2*h,2)}, v3 offset:{u*2048 + h*256}")
    def const_reads(u):
        return [f"ds_read_b128 {vr(CS+16*u+8*k+4*h,4)}, v4 offset:{k*2304 + u*128 + h*16}" for k in range(2) for h in range(2)]
    def stat_mfma(u):
        return [f"v_mfma_f32_16x16x32_bf16 v[200:203], {vr(ONE,4)}, {vr(X+4*u,4)}, {'v[200:203]' if u else '0'}",
                f"v_mfma_f32_16x16x32_bf16 v[204:207], {vr(X+4*u,4)}, {vr(X+4*u,4)}, {'v[204:207]' if u else '0'}"]
    for u in range(9):
        m = stat_mfma(u)
        a(m[0]); a(w1[4 + u]); a(m[1]); a(f"ds_write_b128 v1, {vr(X+4*u,4)} offset:{u*1024}")
    for x in const_reads(0) + const_reads(1): a(x)
    stats_out(a, ST2)
    a("s_waitcnt lgkmcnt(0)\ns_barrier\nds_read_b64 v[10:11], v7\nds_read_b64 v[14:15], v8")
    st(a, 'st2')
    for u in (2, 3, 4):
        for x in const_reads(u): a(x)
    a("v_add_f32 v10, v10, v14\nv_add_f32 v11, v11, v15")
    row_stats(a, "v10", "v11", "v14")
    a("v_rcp_f32 v11, v11")
    a(w1[13])
    a("v_mul_f32 v10, -v10, v11")
    for u in range(9):
        for i in range(4):
            r = X + 4*u + i
            a(f"v_lshlrev_b32 v{TMP+2*i}, 16, v{r}\nv_and_b32 v{TMP+2*i+1}, 0xffff0000, v{r}")
        for i in range(4):
            a(f"v_pk_fma_f32 {vr(TMP+2*i,2)}, {vr(TMP+2*i,2)}, v[10:11], v[10:11] op_sel:[0,1,0] op_sel_hi:[1,1,0]")
        for i in range(4):
            S = CS + 16*u + 2*i
            a(f"v_pk_fma_f32 {vr(TMP+2*i,2)}, {vr(TMP+2*i,2)}, {vr(S+8,2)}, {vr(S,2)}")
        for i in range(4):
            a(f"v_cvt_pk_bf16_f32 v{X+4*u+i}, v{TMP+2*i}, v{TMP+2*i+1}")
        a(f"ds_write_b128 v9, {vr(X+4*u,4)} offset:{u*1024}")
        a(w1[14 + 2*u])
        m = stat_mfma(u)
        a(m[0]); a(w1[15 + 2*u]); a(m[1])
        if u < 4:
            for x in const_reads(u + 5): a(x)
    st(a, 'norm')
    if not gemm:
        stats_out(a, ST3)
        a("s_waitcnt lgkmcnt(0)\ns_barrier")
        a(f"""
        s_lshl_b32 s19, s16, 7
        s_add_u32 s19, s19, {CT}
        v_add_u32 v247, s16, v2
        v_subrev_u32 v247, 1, v247
        v_min_i32 v247, 63, v247
        v_max_i32 v247, 0, v247
        v_lshlrev_b32 v247, 7, v247
        v_add_u32 v247, {CT}, v247
        v_mov_b32 v244, 1
        v_mov_b32 v245, 0
        """)
        p3_setup(a)
        a("s_barrier")
        st(a, 'dr2')
        signal_and_wait(a, "s19", "v247", 3, 4)
        return
    out_offsets(a)
    a(f"""
    v_lshlrev_b32 v3, 5, v5
    s_lshr_b32 s44, s40, 3
    s_add_u32 s44, s44, {WS_CS1}
    s_lshr_b32 s45, s41, 10
    s_lshl_b32 s45, s45, 7
    s_lshl_b32 s36, s42, 1
    s_add_u32 s45, s45, s36
    s_add_u32 s45, s45, {WS_CS1}
    """)
    C1 = 208
    for h in range(2):
        a(f"buffer_load_dwordx4 {vr(C1+12*h,4)}, v3, s[28:31], s44 offen offset:{2304*h}")
        a(f"buffer_load_dwordx4 {vr(C1+12*h+4,4)}, v3, s[28:31], s44 offen offset:{2304*h+16}")
        a(f"buffer_load_dwordx4 {vr(C1+12*h+8,4)}, v3, s[28:31], s45 offen offset:{2304*h}")
    stats_out(a, ST3)
    a(f"""
    v_lshlrev_b32 v7, 3, v13
    v_add_u32 v7, {ST3}, v7
    v_add_u32 v8, {HF}, v6
    s_add_u32 s44, s40, s43
    s_add_u32 s45, s41, s43
    s_add_u32 s44, s44, {WS_TF}
    s_add_u32 s45, s45, {WS_TF}
    s_waitcnt lgkmcnt(0)
    s_barrier
    """)
    st(a, 'b3')
    B, ACC, GC = 52, 16, 196
    for w in range(4):
        a(f"ds_read_b64 {vr(40+2*w,2)}, v7 offset:{128*w}")
    rd = [f"ds_read_b128 {vr(B+8*ks+4*tt,4)}, v8 offset:{(18*tt+ks)*1024}" for ks in range(18) for tt in range(2)]
    for x in rd[:6]: a(x)
    sub = Asm()
    for tt in range(2):
        m, sd = f"v{GC+4*tt}", f"v{GC+4*tt+1}"
        sub(f"v_add_f32 {m}, v{40+2*tt}, v{44+2*tt}\nv_add_f32 {sd}, v{41+2*tt}, v{45+2*tt}")
        row_stats(sub, m, sd, "v48")
        gelu_consts(sub, m, sd, f"v{GC+4*tt+2}", f"v{GC+4*tt+3}")
    consts = [l.strip() for l in sub.lines] + [f"v_add_f32 v{C1+i}, v{C1+i}, v{C1+12+i}" for i in range(12)]
    def epi(t):
        o = []
        for tt in range(2):
            g = GC + 4*tt
            out = 232 + 4*tt + 2*t if t < 2 else 240 + 2*tt
            o += gelu_tile(ACC+8*t+4*tt, C1+4*t, g, g+1, g+2, g+3, 244 + 4*tt, out)
            if t == 1: o.append(f"buffer_store_dwordx4 {vr(232+4*tt,4)}, v6, s[28:31], s44 offen{SCS}" + ("\ns_add_u32 s44, s44, 18432" if tt == 0 else ""))
            if t == 2: o.append(f"buffer_store_dwordx2 {vr(240+2*tt,2)}, v6, s[28:31], s45 offen{SCS} ;@st" + ("\ns_add_u32 s45, s45, 18432" if tt == 0 else ""))
        return o
    w2 = wstream("s18", 54, 0, "w2_")
    S = Sched(small_gemm(B, ACC))
    for i, x in enumerate(rd[6:]): S.put(i, x)
    for i, x in enumerate(w1[32:]): S.put(i + i // 2, x)
    S.stream(0, 38, consts)
    for i, x in enumerate(w2[:18]): S.put(38 + 2 * i, x)
    S.stream(40, 74, epi(0))
    for i, x in enumerate(w2[18:34]): S.put(74 + 2 * i, x)
    S.stream(76, 108, epi(1))
    S.emit(a)
    st(a, 'g2')
    for x in epi(2): a(x)
    st(a, 'e2')
    for x in w2[34:42]: a(x)
    a("@wait_vm st\ns_barrier")
    st(a, 'dr2')
    for x in w2[42:]: a(x)
    p3_setup(a)

def ring_loads():
    return [f"buffer_load_dwordx4 {ar(4*f,4)}, v6, s[28:31], s32 offen offset:{(f%4)*1024} ;@W{f}" + ("\ns_add_u32 s32, s32, 4096" if f % 4 == 3 else "")
            for f in range(PRE)]

def p3_setup(a):
    a(f"""
    s_add_u32 s36, s5, s34
    s_lshl_b32 s36, s36, 4
    s_add_u32 s37, s35, 1
    v_add_u32 v3, s36, v13
    v_subrev_u32 v7, s37, v3
    v_add_u32 v8, s37, v3
    v_mov_b32 v9, {OOB}
    """)
    for v in ("v7", "v8"):
        a(f"""
        v_lshrrev_b32 v10, 4, {v}
        v_mul_u32_u24 v10, 18432, v10
        v_and_b32 v11, 15, {v}
        v_lshl_add_u32 v10, v11, 4, v10
        v_lshl_add_u32 v10, v5, 8, v10
        v_cmp_gt_u32 vcc, 2048, {v}
        v_cndmask_b32 {v}, v9, v10, vcc
        """)
    a(f"""
    v_cmp_gt_u32 vcc, 2, v5
    v_cndmask_b32 v9, v8, v7, vcc
    s_mul_i32 s36, s35, 9216
    s_mul_i32 s37, s34, 18432
    s_add_u32 s37, s37, s36
    s_add_u32 s36, s36, {WS_TF}
    s_mov_b32 m0, s37
    s_mul_i32 s32, s13, {WBLK}
    s_mul_i32 s33, s3, 165888
    s_add_u32 s33, s33, s32
    s_add_u32 s33, s33, {WS_WT + 8*WBLK}
    s_mul_i32 s37, s3, 55296
    s_add_u32 s32, s32, s37
    s_add_u32 s32, s32, {WS_WT}
    """)

def phase3(a, gemm):
    a("s_barrier")
    st(a, 'h2')
    for u in range(9):
        a(f"buffer_load_dwordx4 {'v7' if u < 4 else 'v9' if u == 4 else 'v8'}, s[28:31], s36 offen{SC} lds ;@t")
        if u < 8: a("s_add_u32 m0, m0, 1024\ns_add_u32 s36, s36, 1024")
    if not gemm:
        a(f"""
        s_waitcnt vmcnt(0)
        s_barrier
        s_mul_i32 s36, s13, 2304
        s_add_u32 s36, s36, {WS_CS3}
        s_mov_b32 m0, {CSO}
        """)
        for h in range(2):
            for i in range(3):
                a(f"buffer_load_dwordx4 v6, s[28:31], s36 offen lds\ns_add_u32 m0, m0, 1024\ns_add_u32 s36, s36, {1024 if i < 2 else 4608*4 - 2048}")
        if opt('l2pf', 0):
            a(f"""
            s_mul_i32 s36, s13, {WBLK}
            s_and_b32 s37, s12, {(4 << NX) - 1}
            s_mul_i32 s37, s37, {WBLK // (4 << NX)}
            s_add_u32 s36, s36, s37
            s_add_u32 s36, s36, {WS_WT}
            s_mov_b32 m0, {DUMP}
            """)
            for h in range(2):
                n = min(opt('l2pf', 1), -(-WBLK // (4 << NX) // 1024))
                for i in range(n):
                    a(f"buffer_load_dwordx4 v6, s[28:31], s36 offen lds\ns_add_u32 s36, s36, {1024 if i < n - 1 else 8*WBLK - (n - 1)*1024}")
        for x in ring_loads(): a(x)
        a(f"""
        s_lshl_b32 s19, s12, 7
        s_add_u32 s19, s19, {CX}
        v_mov_b32 v247, s19
        """)
        p4_setup(a)
        a("s_waitcnt vmcnt(0)\ns_barrier")
        st(a, 'dr3')
        signal_and_wait(a, "s19", "v247", 1, 8)
        return
    B, ACC, HB = 52, 16, 200
    a(f"""
    s_add_u32 s44, s40, {HF}
    s_add_u32 s45, s41, {HF}
    v_add_u32 v3, s44, v6
    v_add_u32 v4, s45, v6
    """)
    for tt in range(2):
        a(f"ds_read_b128 {vr(HB+4*tt,4)}, v3 offset:{18432*tt}\nds_read_b64 {vr(HB+8+2*tt,2)}, v4 offset:{18432*tt}")
    a(f"""
    s_add_u32 s44, s40, s43
    s_add_u32 s45, s41, s43
    s_add_u32 s44, s44, {WS_XBF}
    s_add_u32 s45, s45, {WS_XBF}
    s_mov_b32 s38, 0x3f803f80
    v_mul_u32_u24 v3, 96, v13
    v_and_b32 v4, 1, v5
    v_mul_u32_u24 v4, {16*96}, v4
    v_add_u32 v3, v3, v4
    v_mov_b32 v4, {OOB}
    v_cmp_gt_u32 vcc, 2, v5
    v_cndmask_b32 v3, v4, v3, vcc
    s_mul_i32 s36, s5, {16*96}
    s_lshl_b32 s37, s15, 3
    s_add_u32 s36, s36, s37
    s_add_u32 s36, s36, {WS_ST4}
    """)
    for i in range(4): a(f"v_mov_b32 v{40+i}, 0")
    a("@wait_vm t\ns_barrier")
    st(a, 't')
    rd = [f"ds_read_b128 {vr(B+8*ks+4*tt,4)}, v6 offset:{(18*tt+ks)*1024}" for ks in range(18) for tt in range(2)]
    for x in rd[:6]: a(x)
    def epi(t):
        o = []
        for tt in range(2):
            hb = HB + 4*tt + 2*t if t < 2 else HB + 8 + 2*tt
            acc = ACC + 8*t + 4*tt; tm = 216 + 4*tt
            for i in range(2):
                o += [f"v_lshlrev_b32 v{tm+2*i}, 16, v{hb+i}", f"v_and_b32 v{tm+2*i+1}, 0xffff0000, v{hb+i}"]
            o += [f"v_add_f32 v{tm+i}, v{tm+i}, v{acc+i}" for i in range(4)]
            o += [f"v_cvt_pk_bf16_f32 v{hb+i}, v{tm+2*i}, v{tm+2*i+1}" for i in range(2)]
            if t == 1: o.append(f"buffer_store_dwordx4 {vr(HB+4*tt,4)}, v6, s[28:31], s44 offen{SCS}" + ("\ns_add_u32 s44, s44, 18432" if tt == 0 else ""))
            if t == 2: o.append(f"buffer_store_dwordx2 {vr(HB+8+2*tt,2)}, v6, s[28:31], s45 offen{SCS}" + ("\ns_add_u32 s45, s45, 18432" if tt == 0 else ""))
            for i in range(2):
                o += [f"v_dot2c_f32_bf16 v{40+2*tt}, s38, v{hb+i}", f"v_dot2c_f32_bf16 v{41+2*tt}, v{hb+i}, v{hb+i}"]
        return o
    ring = ring_loads()
    S = Sched(small_gemm(B, ACC))
    for i, x in enumerate(rd[6:]): S.put(i, x)
    S.stream(40, 72, epi(0))
    S.stream(76, 108, epi(1))
    for i, x in enumerate(ring[:8]): S.put_free(74 + 4 * i, x)
    S.emit(a)
    st(a, 'g3')
    for x in epi(2): a(x)
    for i in range(4): group_allreduce(a, f"v{40+i}", f"v{44+i}")
    a(f"""
    v_cmp_eq_u32 vcc, 1, v5
    v_cndmask_b32 v40, v40, v42, vcc
    v_cndmask_b32 v41, v41, v43, vcc
    buffer_store_dwordx2 v[40:41], v3, s[28:31], s36 offen{SCS} ;@st
    """)
    st(a, 'e3')
    for x in ring[8:16]: a(x)
    a("@wait_vm st\ns_barrier")
    st(a, 'dr3')
    for x in ring[16:]: a(x)
    p4_setup(a)

def p4_setup(a):
    a(f"""
    s_lshl_b32 s6, s12, 2
    s_add_u32 s6, s6, s3
    s_mul_i32 s6, s6, 18432
    s_add_u32 s6, s6, {WS_XBF}
    s_mul_i32 s7, s3, 18432
    s_mov_b32 m0, s7
    v_mul_u32_u24 v3, 96, v13
    v_mul_u32_u24 v4, 24, v5
    v_add_u32 v3, v3, v4
    s_mul_i32 s34, s12, {64*96}
    s_add_u32 s34, s34, {WS_ST4}
    s_mul_i32 s35, s3, 3
    s_add_u32 s36, s35, 1
    s_lshr_b32 s36, s36, 1
    s_and_b32 s38, s3, 1
    s_add_u32 s37, s35, 2
    s_cmp_eq_u32 s38, 1
    s_cselect_b32 s37, s35, s37
    s_lshr_b32 s37, s37, 1
    s_lshl_b32 s39, s36, 12
    s_add_u32 s39, s39, {HOFF}
    v_add_u32 v0, s39, v6
    s_lshl_b32 s39, s37, 12
    s_lshl_b32 s40, s38, 3
    s_add_u32 s39, s39, s40
    s_add_u32 s39, s39, {HOFF}
    v_add_u32 v1, s39, v6
    s_lshl_b32 s36, s36, 7
    s_add_u32 s36, s36, {CSO}
    s_lshl_b32 s37, s37, 7
    s_lshl_b32 s40, s38, 4
    s_add_u32 s37, s37, s40
    s_add_u32 s37, s37, {CSO}
    v_lshl_add_u32 v4, v5, 5, s36
    v_lshl_add_u32 v7, v5, 5, s37
    v_add_u32 v240, 36864, v6
    v_add_u32 v238, {HOFF}, v6
    v_add_u32 v239, {HOFF + 36864}, v6
    v_mov_b32 v241, v5
    v_mov_b32 v242, v13
    s_mul_i32 s41, s3, 9
    s_add_u32 s42, s41, 1
    s_lshr_b32 s42, s42, 1
    s_lshl_b32 s42, s42, 10
    s_add_u32 s43, s41, 8
    s_cmp_eq_u32 s38, 1
    s_cselect_b32 s43, s41, s43
    s_lshr_b32 s43, s43, 1
    s_lshl_b32 s43, s43, 10
    s_lshl_b32 s40, s38, 3
    s_add_u32 s43, s43, s40
    s_mul_i32 s44, s13, {ACT}
    s_mul_i32 s45, s12, {4*18432}
    s_add_u32 s44, s44, s45
    s_add_u32 s44, s44, {WS_PART}
    s_add_u32 s42, s42, s44
    s_add_u32 s43, s43, s44
    """)
    for tt in range(1, 4):
        a(f"s_add_u32 s{47+tt}, s42, {18432*tt}\ns_add_u32 s{50+tt}, s43, {18432*tt}")

def phase4(a):
    ACC, BF, GC, CS, TM, PK = 8, 152, 184, 200, 224, 232
    DP = PRE - 12
    pair_s = ["s42", "s48", "s49", "s50"]; single_s = ["s43", "s51", "s52", "s53"]
    adma = [f"buffer_load_dwordx4 v6, s[28:31], s6 offen{SC} lds ;@A{ks}\ns_add_u32 m0, m0, 1024\ns_add_u32 s6, s6, 1024" for ks in range(18)]
    a("s_barrier")
    st(a, 'h3')
    for x in adma[:6]: a(x)
    groups = [(j, s) for s in range(54) for j in range(3)] + [(j, s) for s in range(54, 66) for j in range(9)]
    for pr in range(4): groups += [(2*pr + e, s) for s in range(66, 72) for e in range(2)]
    groups += [(8, s) for s in range(66, 72)]
    NG = len(groups)
    def lds_off(s, tt): return (18*tt + s % 18) * 1024 if s < 54 else HOFF + (4*(s - 54) + tt) * 1024
    def breg(s, tt):
        if s < 66: return vr(BF + 16*(s & 1) + 4*tt, 4)
        k = 4*(s - 66) + tt
        return vr(GC + 4*k, 4) if k < 12 else ar(AG2 + 4*(k - 12), 4)
    def bread(s, tt):
        off = lds_off(s, tt); q = off // 36864
        return f"ds_read_b128 {breg(s, tt)}, {['v6','v240','v238','v239'][q]} offset:{off - q*36864}"
    first_move = {3: 61, 4: 62, 5: 63}
    def acc_of(j, s, tt):
        if s < 54: return vr(ACC + 48*(s // 18) + 16*j + 4*tt, 4)
        if j < 3 or s >= first_move.get(j, 66): return vr(ACC + 16*j + 4*tt, 4)
        return ar(AG2 + 16*(j - 3) + 4*tt, 4)
    mf = []
    for f, (j, s) in enumerate(groups):
        for tt in range(4):
            d = acc_of(j, s, tt)
            mf.append(f"v_mfma_f32_16x16x32_bf16 {d}, {ar(4*(f % RING),4)}, {breg(s, tt)}, {'0' if s in (0, 18, 36, 54) else d}")
    S = Sched(mf)
    def wload(f):
        j, s = groups[f]
        if s < 54:
            k = f % 54
            x = f"buffer_load_dwordx4 {ar(4*(f % RING),4)}, v6, s[28:31], s32 offen offset:{(k%4)*1024} ;@W{f}"
            if k == 53: x += f"\ns_add_u32 s32, s32, {221184 - 13*4096}"
            elif k % 4 == 3: x += "\ns_add_u32 s32, s32, 4096"
            return x
        return f"s_add_u32 s54, s33, {(s-54)*9216 + j*1024}\nbuffer_load_dwordx4 {ar(4*(f % RING),4)}, v6, s[28:31], s54 offen ;@W{f}"
    for f in range(12): S.put(4*f, adma[6 + f])
    for f in range(12, NG - DP): S.put(4*f, wload(f + DP))
    start = {}
    for f, (j, s) in enumerate(groups): start.setdefault(s, f)
    for s in range(65):
        g0 = start[s]
        for tt in range(4): S.put(4*g0 + ([1, 2, 3, 5][tt] if s < 54 else 6*tt + 7), bread(s + 1, tt))
    for k in range(24): S.put_free(4*261 + 1 + k + k // 3, bread(66 + k // 4, k % 4))
    for f in range(0, NG, 3):
        lg = " lgkmcnt(0)" if f in start.values() and f <= 270 else ""
        S.pre[4*f].append(f"@wait_vm W{min(f + 2, NG - 1)}{lg}")
    S.pre[4*15].append("@wait_vm A11\ns_barrier")
    S.pre[4*33].append("@wait_vm A17\ns_barrier")
    for gb in (159, 207, 261): S.pre[4*gb].append("s_barrier")
    T = ACC + 48
    for tt in range(4):
        S.put_free(4*(13 + 2*tt) + 2, f"buffer_load_dwordx4 {vr(T+8*tt,4)}, v3, s[28:31], s34 offen{SC}")
        S.put_free(4*(14 + 2*tt) + 2, f"buffer_load_dwordx2 {vr(T+8*tt+4,2)}, v3, s[28:31], s34 offen offset:16{SC}\ns_add_u32 s34, s34, {16*96}")
    sub = Asm()
    for tt in range(4):
        b = T + 8*tt; m, sd = f"v{GC+4*tt}", f"v{GC+4*tt+1}"
        sub(f"v_add_f32 {m}, v{b}, v{b+2}\nv_add_f32 {sd}, v{b+1}, v{b+3}\nv_add_f32 {m}, {m}, v{b+4}\nv_add_f32 {sd}, {sd}, v{b+5}")
        group_allreduce(sub, m, f"v{b}"); group_allreduce(sub, sd, f"v{b+1}")
        row_stats(sub, m, sd, f"v{b}")
        gelu_consts(sub, m, sd, f"v{GC+4*tt+2}", f"v{GC+4*tt+3}")
    S.stream(4*34, 4*53, [l.strip() for l in sub.lines])
    def cs_loads(p):
        o = []
        for h in range(2):
            o += [f"ds_read_b128 {vr(CS+12*h,4)}, v4 offset:{3072*h + 768*p}", f"ds_read_b128 {vr(CS+12*h+4,4)}, v4 offset:{3072*h + 768*p + 16}",
                  f"ds_read_b128 {vr(CS+12*h+8,4)}, v7 offset:{3072*h + 768*p}"]
        return o
    moves = lambda t: [f"v_accvgpr_read_b32 v{ACC + 16*t + i}, a{AG2 + 16*(t-3) + i}" for i in range(16)]
    for t, s in first_move.items():
        g = start[s] + t
        for i, x in enumerate(moves(t)): S.put(4*(g - 6) + 1 + i + i // 3, x)
    def gelu_pass(p):
        o = [f"v_add_f32 v{CS+i}, v{CS+i}, v{CS+12+i}" for i in range(12)]
        k = 0
        for tt in range(4):
            g = GC + 4*tt
            for t in range(3):
                o += gelu_tile(ACC + 48*p + 16*t + 4*tt, CS + 4*t, g, g+1, g+2, g+3, TM + 4*(k & 1), PK + 2*t); k += 1
                if t == 1: o.append(f"ds_write_b128 v0, {vr(PK,4)} offset:{p*6*4096 + tt*1024}")
                if t == 2: o.append(f"ds_write_b64 v1, {vr(PK+4,2)} offset:{p*6*4096 + tt*1024}")
        return o
    win = ((55, 121), (123, 191), (193, 261))
    for p, (lo, hi) in enumerate(win):
        for i, x in enumerate(cs_loads(p)): S.put_free(4*(lo - 2) + i, x)
        S.stream(4*lo, 4*hi - 2, gelu_pass(p))
    S.stream(4*272, 4*300, moves(6) + moves(7) + moves(8))
    def epi(tiles):
        o = []
        for tt in range(4):
            d = ACC + 16*tiles[0] + 4*tt
            for e, t in enumerate(tiles):
                b = ACC + 16*t + 4*tt
                o += [f"v_cvt_pk_bf16_f32 v{d + 2*e + i}, v{b+2*i}, v{b+2*i+1}" for i in range(2)]
            if len(tiles) == 2: o.append(f"buffer_store_dwordx4 {vr(d,4)}, v6, s[28:31], {pair_s[tt]} offen offset:{(tiles[0]>>1)*1024}{SCS}")
            else: o.append(f"buffer_store_dwordx2 {vr(d,2)}, v6, s[28:31], {single_s[tt]} offen{SCS}")
        return o
    for pr in range(4):
        g = 270 + 12*(pr + 1)
        S.stream(4*g + 3, 4*min(g + 10, NG), epi((2*pr, 2*pr + 1)))
    if opt('verbose', 0): print("modelled cycles per block", [S.cycles(216*b, 216*b + 216) for b in range(6)])
    a("@wait_vm A5\ns_barrier")
    st(a, 'a5')
    for tt in range(4): a(bread(0, tt))
    for b in range(6):
        S.emit(a, 216*b, 216*b + 216)
        st(a, f'blk{b}')
    st(a, 'g4')
    for x in epi((8,)): a(x)

def phase5(a):
    a(f"""
    s_and_b32 s34, s4, 1
    s_lshr_b32 s35, s4, 1
    s_mul_i32 s35, s35, 9
    s_add_u32 s35, s35, s3
    s_lshl_b32 s36, s35, 7
    s_add_u32 s36, s36, {WS_MODF + 2*2304}
    v_lshlrev_b32 v3, 5, v241
    s_lshl_b32 s19, s12, 7
    s_add_u32 s19, s19, {CP}
    v_mov_b32 v247, s19
    v_mov_b32 v244, 1
    v_mov_b32 v245, 0
    s_lshl_b32 s37, s14, 1
    s_add_u32 s37, s37, s34
    s_mul_i32 s37, s37, 18
    s_add_u32 s37, s37, s35
    s_lshl_b32 s37, s37, 10
    v_add_u32 v0, s37, v6
    s_mul_i32 s38, s12, {4*18432}
    s_add_u32 s37, s37, s38
    s_add_u32 s37, s37, {WS_PART}
    s_lshl_b32 s38, s3, 10
    s_add_u32 s38, s38, {X1L}
    v_add_u32 v1, s38, v6
    v_mul_u32_u24 v7, 1152, v242
    v_lshl_add_u32 v7, v241, 4, v7
    s_add_u32 s38, s5, s34
    s_mul_i32 s38, s38, {16*1152}
    s_lshl_b32 s39, s35, 6
    s_add_u32 s38, s38, s39
    """)
    G, XB, X1, P = 16, 40, 52, 64
    for i in range(3):
        a(f"buffer_load_dwordx4 {vr(G+8*i,4)}, v3, s[28:31], s36 offen offset:{512*i}\nbuffer_load_dwordx4 {vr(G+8*i+4,4)}, v3, s[28:31], s36 offen offset:{512*i+16}")
        a(f"ds_read_b128 {vr(XB+4*i,4)}, v0 offset:{4096*i}\nds_read_b128 {vr(X1+4*i,4)}, v1 offset:{4096*i if i < 2 else 0}")
    lab = a.label("p5")
    a(f"s_waitcnt vmcnt(0) lgkmcnt(0)\ns_barrier")
    st(a, 'dr4')
    a(f"s_cmp_lg_u32 s3, 3\ns_cbranch_scc1 {lab}_go")
    signal_and_wait(a, "s19", "v247", 1, 8)
    a(f"{lab}_go:\ns_barrier")
    st(a, 'h4')
    def loads(i):
        for c in range(8):
            a(f"s_add_u32 s39, s37, {c*ACT + 4096*i}\nbuffer_load_dwordx4 {vr(P+32*i+4*c,4)}, v6, s[28:31], s39 offen{SC}")
    def unpack(d, r): a(f"v_lshlrev_b32 v{d}, 16, v{r}\nv_and_b32 v{d+1}, 0xffff0000, v{r}")
    S, U = 160, 168
    def finish(i):
        for c in range(8):
            for k in range(4):
                if c == 0: unpack(S + 2*k, P + 32*i + k)
                else:
                    unpack(U + 2*k, P + 32*i + 4*c + k)
                    a(f"v_pk_add_f32 {vr(S+2*k,2)}, {vr(S+2*k,2)}, {vr(U+2*k,2)}")
        def rnd():
            for k in range(4): a(f"v_cvt_pk_bf16_f32 v{176+k}, v{S+2*k}, v{S+2*k+1}")
            for k in range(4): unpack(S + 2*k, 176 + k)
        def addv(r):
            for k in range(4): unpack(U + 2*k, r + k)
            for k in range(4): a(f"v_pk_add_f32 {vr(S+2*k,2)}, {vr(S+2*k,2)}, {vr(U+2*k,2)}")
        rnd(); addv(XB + 4*i); rnd()
        for k in range(4): a(f"v_pk_mul_f32 {vr(S+2*k,2)}, {vr(S+2*k,2)}, {vr(G+8*i+2*k,2)}")
        rnd(); addv(X1 + 4*i)
        for k in range(4): a(f"v_cvt_pk_bf16_f32 v{180+4*i+k}, v{S+2*k}, v{S+2*k+1}")
        a(f"buffer_store_dwordx4 {vr(180+4*i,4)}, v7, s[8:11], s38 offen offset:{256*i}")
    a(f"s_cmp_eq_u32 s3, 0\ns_cbranch_scc1 {lab}_three")
    loads(0); loads(1); finish(0); st(a, 'ld5'); finish(1)
    a.end()
    a(f"{lab}_three:\nds_read_b128 {vr(X1+8,4)}, v1 offset:8192")
    loads(0); loads(1); loads(2); finish(0); st(a, 'ld5'); finish(1); finish(2)
    a.end()

def km(a, name="km_kernel"):
    a.kernel(name, 256, 256, LDSM, 252, agpr=AG2 + 96, sgpr=62)
    a("s_cmp_ge_u32 s2, 256\ns_cbranch_scc1 km_exit"); a.diag_init()
    setup(a)
    a("s_cmp_eq_u32 s3, 3\ns_cbranch_scc1 km_helper")
    phase2(a, True); phase3(a, True)
    a("s_branch km_mlp\nkm_helper:")
    phase2(a, False); phase3(a, False)
    a("km_mlp:")
    phase4(a); phase5(a)
    a("km_exit:\ns_endpgm")

if __name__ == "__main__":
    a = Asm(); km(a); open("km_tmp.s", "w").write(a.text()); print(a.stats)
```

```python
import sys
from common import *
import k0, k1, k23, k45, km
NAME = "adaLN_cond__ssm_conv_s4d__mixer_s_mlp__prompt"
def header():
    lines = []
    for l in open(f"cdna_kernels/{NAME}.s.ref"):
        if l.startswith("; Override") or not l.startswith(";"): break
        lines.append(l)
    return "".join(lines)
def build(path, diag=False):
    a = Asm(); a.diag = diag
    k0.k0(a); k1.k1(a)
    if opt('fused', 1): km.km(a)
    else: k23.k2(a); k23.k3(a); k45.k4(a); k45.k5(a)
    open(path, "w").write(a.text(header()))
    return a
if __name__ == "__main__":
    p = sys.argv[1] if len(sys.argv) > 1 else f"cdna_kernels/{NAME}.s"
    print(build(p).stats); build(sys.argv[2] if len(sys.argv) > 2 else 'diag.s', opt('diag', 1))
```
